```python
import torch

def _softmax(x, axis=-1):
    return torch.softmax(x, dim=axis)
def _gelu(x):
    return torch.nn.functional.gelu(x, approximate="tanh")
def _silu(x):
    return torch.nn.functional.silu(x)
def _sigmoid(x):
    return torch.sigmoid(x)
def _layernorm(x, axis=-1, eps=1e-5):
    m = x.mean(dim=axis, keepdim=True)
    v = x.var(dim=axis, keepdim=True, unbiased=False)
    return (x - m) / torch.sqrt(v + eps)
def _scatter_add(tgt, idx, src, axis=0):
    return tgt.clone().index_add_(axis, idx, src)
def _segment_sum(src, seg, n):
    out = torch.zeros((n,) + src.shape[1:], dtype=src.dtype)
    return out.index_add_(0, seg, src)
def _pad(x, pw):
    flat = tuple(v for pair in reversed(pw) for v in pair)
    return torch.nn.functional.pad(x, flat)

kernel_name = 'standalone__deep_cross_pnn__recsys'

def setup_inputs():

    _w = (lambda a: (lambda t: t.to(torch.bfloat16) if t.is_floating_point() else t)(torch.as_tensor(a)))
    B, F, D, V = 16384, 100, 128, min(1000, 100000)
    H = 4 * D
    return {
        "idx": _w((lambda lo, hi, *s: torch.randint(lo, hi, s))(0, V, B, F).to(torch.int64)),
        "table": _w((lambda *s: torch.randn(*s, dtype=torch.bfloat16) * 1.6)(V, D) * (D ** -0.5)),
        "w_p": _w((lambda *s: torch.randn(*s, dtype=torch.bfloat16) * 0.05)(F * F) * ((F * F) ** -0.5)),
        "w1": _w((lambda *s: torch.randn(*s, dtype=torch.bfloat16) * 1.6)(F * D, H) * ((F * D) ** -0.5)),
        "b1": _w((lambda *s: torch.randn(*s, dtype=torch.bfloat16) * 12.8)(H) * 0.01),
        "w2": _w((lambda *s: torch.randn(*s, dtype=torch.bfloat16) * 0.05)(H) * (H ** -0.5)),
        "b2": _w((lambda *s: torch.randn(*s, dtype=torch.bfloat16) * 1.6)(1) * 0.01),
    }

def reference(idx, table, w_p, w1, b1, w2, b2):
    emb = table[idx]
    B = emb.shape[0]; F = emb.shape[1]; D = emb.shape[2]
    ip = torch.einsum('bid,bjd->bij', emb, emb)
    ip = ip.reshape(B, F * F)
    logit_p = ip @ w_p
    z = emb.reshape(B, F * D)
    h = _gelu(z @ w1 + b1)
    logit_d = h @ w2 + b2
    return logit_p + logit_d
```

```python
import sys, struct

B, F, D, V, H = 16384, 100, 128, 1000, 512
WS_BYTES = 268435456
WS_P = 0
SLICE_BYTES = F * V * 16
WS_SCHED = 0x6400000
WS_PART = 0x6800000
WS_PNN = 0x6C00000

def f32bits(x):
    return struct.unpack("<I", struct.pack("<f", x))[0]

class Asm:
    def __init__(self):
        self.lines = []
    def __call__(self, s=""):
        for l in s.split("\n"):
            self.lines.append("    " + l.strip() if l.strip() and not l.strip().endswith(":") else l.strip())
    def label(self, s):
        self.lines.append(s + ":")
    def text(self):
        return "\n".join(self.lines) + "\n"

def kernel_header(a, name):
    a.lines.append(f".globl {name}")
    a.lines.append(".p2align 8")
    a.lines.append(f".type {name},@function")
    a.label(name)

def kernel_desc(name, vgpr, sgpr=96, accum=None):
    if accum is None:
        accum = (vgpr + 3) // 4 * 4
    return f""".p2align 6
.amdhsa_kernel {name}
  .amdhsa_next_free_vgpr {vgpr}
  .amdhsa_next_free_sgpr {sgpr}
  .amdhsa_accum_offset {accum}
  .amdhsa_group_segment_fixed_size 0
  .amdhsa_kernarg_size 80
  .amdhsa_user_sgpr_count 2
  .amdhsa_user_sgpr_kernarg_segment_ptr 1
  .amdhsa_system_sgpr_workgroup_id_x 1
.end_amdhsa_kernel
"""

def srd(a, d, base, nbytes):
    a(f"s_mov_b32 s{d}, s{base}")
    a(f"s_and_b32 s{d+1}, s{base+1}, 0xffff")
    a(f"s_mov_b32 s{d+2}, {nbytes}")
    a(f"s_mov_b32 s{d+3}, 0x00020000")

BUF_STRIDE = 64512
def gen_k2(a, name="k2_gather_kernel", DEPTH=4, NB=6):
    NW = 8; T = 16
    kernel_header(a, name)
    ACC = 0
    SEL = 64
    SCH = 68
    DAT = 100
    ADR = DAT + NB * 8
    VL16 = ADR + 4
    VLANE = VL16 + 1
    TMP = VLANE + 1
    NV = TMP + 12
    a(f"""
    s_cmp_ge_u32 s2, 256
    s_cbranch_scc1 {name}_end
    s_load_dwordx2 s[4:5], s[0:1], 72
    s_load_dwordx4 s[8:11], s[0:1], 32
    v_and_b32 v{VLANE}, 63, v0
    v_lshrrev_b32 v{TMP}, 6, v0
    v_lshlrev_b32 v{VL16}, 4, v{VLANE}
    v_readfirstlane_b32 s6, v{TMP}
    s_and_b32 s7, s2, 63
    s_lshr_b32 s3, s2, 6
    s_waitcnt lgkmcnt(0)
    """)
    srd(a, 12, 4, WS_BYTES)
    srd(a, 16, 8, H * 2)
    srd(a, 20, 10, H * 2)
    a(f"""
    s_mul_i32 s24, s7, {SLICE_BYTES}
    s_lshl_b32 s27, s6, 13
    s_add_u32 s24, s24, s27
    s_add_u32 s25, s24, 4096
    s_add_u32 s28, s27, 4096
    s_add_u32 s29, s27, {BUF_STRIDE}
    s_add_u32 s30, s28, {BUF_STRIDE}
    s_mul_i32 s26, s3, {25*8}
    s_add_u32 s26, s26, s6
    s_lshl_b32 s26, s26, 12
    s_add_u32 s26, s26, {WS_SCHED}
    """)
    uid = [0]
    def issue_loads(buf):
        uid[0] += 1
        m0a, m0b = (27, 28) if buf == 0 else (29, 30)
        for tq in range(4):
            a(f"buffer_load_dwordx4 v[{SCH+16*buf+4*tq}:{SCH+16*buf+4*tq+3}], v{VL16}, s[12:15], s26 offen offset:{tq*1024}")
        a(f"s_mov_b32 m0, s{m0a}")
        a(f"s_add_u32 s26, s26, {8*4096}")
        for i in range(4):
            a(f"buffer_load_dwordx4 v{VL16}, s[12:15], s24 offen offset:{i*1024} lds")
        a(f"s_mov_b32 m0, s{m0b}")
        a(f"s_add_u32 s24, s24, 64000")
        for i in range(3):
            a(f"buffer_load_dwordx4 v{VL16}, s[12:15], s25 offen offset:{i*1024} lds")
        a(f"s_cmp_eq_u32 s6, 7")
        a(f"s_cbranch_scc1 {name}_sk{uid[0]}")
        a(f"buffer_load_dwordx4 v{VL16}, s[12:15], s25 offen offset:3072 lds")
        a.label(f"{name}_sk{uid[0]}")
        a(f"s_add_u32 s25, s25, 64000")
    issue_loads(0)
    a(f"""
    v_lshrrev_b32 v{TMP}, 3, v{VLANE}
    v_lshrrev_b32 v{TMP+1}, 4, v{VLANE}
    v_xor_b32 v{TMP}, v{TMP}, v{TMP+1}
    v_and_b32 v{TMP}, 1, v{TMP}
    v_and_b32 v{TMP+1}, 1, v{VLANE}
    v_lshlrev_b32 v{TMP+1}, 4, v{TMP+1}
    v_mov_b32 v{TMP+2}, 0x3f80
    v_lshlrev_b32 v{TMP+2}, v{TMP+1}, v{TMP+2}
    v_cmp_eq_u32 vcc, 0, v{TMP}
    s_nop 1
    v_cndmask_b32 v{TMP+2}, 0, v{TMP+2}, vcc
    v_bfe_u32 v{TMP+3}, v{VLANE}, 1, 2
    """)
    for i in range(4):
        a(f"v_cmp_eq_u32 vcc, {i}, v{TMP+3}")
        a("s_nop 1")
        a(f"v_cndmask_b32 v{SEL+i}, 0, v{TMP+2}, vcc")
    for i in range(64):
        a(f"v_mov_b32 v{ACC+i}, 0")
    def chunk(buf, last):
        a("s_waitcnt vmcnt(0)")
        a("s_barrier")
        if not last:
            issue_loads(buf ^ 1)
        off = buf * BUF_STRIDE
        for t in range(T + DEPTH):
            if t < T:
                ad = ADR + 2 * (t & 1)
                d = DAT + 8 * (t % NB)
                a(f"v_and_b32 v{ad}, 0xffff, v{SCH+16*buf+t}")
                a(f"v_lshrrev_b32 v{ad+1}, 16, v{SCH+16*buf+t}")
                a(f"ds_read_b128 v[{d}:{d+3}], v{ad} offset:{off}")
                a(f"ds_read_b128 v[{d+4}:{d+7}], v{ad+1} offset:{off}")
            if t >= DEPTH:
                tt = t - DEPTH
                d = DAT + 8 * (tt % NB)
                outstanding = 2 * (min(t, T - 1) - tt)
                a(f"s_waitcnt lgkmcnt({outstanding+1})")
                a(f"v_mfma_f32_16x16x32_bf16 v[{ACC+4*tt}:{ACC+4*tt+3}], v[{SEL}:{SEL+3}], v[{d}:{d+3}], v[{ACC+4*tt}:{ACC+4*tt+3}]")
                a(f"s_waitcnt lgkmcnt({outstanding})")
                a(f"v_mfma_f32_16x16x32_bf16 v[{ACC+4*tt}:{ACC+4*tt+3}], v[{SEL}:{SEL+3}], v[{d+4}:{d+7}], v[{ACC+4*tt}:{ACC+4*tt+3}]")
    a("s_mov_b32 s31, 0")
    a.label(f"{name}_loop")
    chunk(0, False)
    chunk(1, False)
    a(f"""
    s_add_u32 s31, s31, 1
    s_cmp_lt_u32 s31, 12
    s_cbranch_scc1 {name}_loop
    """)
    chunk(0, True)
    BV = SCH; WV = SCH + 4; RAW = SCH + 8
    a(f"""
    v_bfe_u32 v{TMP}, v{VLANE}, 4, 1
    v_lshlrev_b32 v{TMP}, 3, v{TMP}
    s_lshl_b32 s32, s7, 4
    buffer_load_dwordx2 v[{RAW}:{RAW+1}], v{TMP}, s[16:19], s32 offen
    buffer_load_dwordx2 v[{RAW+2}:{RAW+3}], v{TMP}, s[20:23], s32 offen
    s_mov_b32 s33, {f32bits(-0.1029432397):#x}
    s_mov_b32 s34, {f32bits(-2.302208198):#x}
    v_mov_b32 v{TMP+1}, s34
    s_waitcnt vmcnt(0)
    v_lshlrev_b32 v{BV}, 16, v{RAW}
    v_and_b32 v{BV+1}, 0xffff0000, v{RAW}
    v_lshlrev_b32 v{BV+2}, 16, v{RAW+1}
    v_and_b32 v{BV+3}, 0xffff0000, v{RAW+1}
    v_lshlrev_b32 v{WV}, 16, v{RAW+2}
    v_and_b32 v{WV+1}, 0xffff0000, v{RAW+2}
    v_lshlrev_b32 v{WV+2}, 16, v{RAW+3}
    v_and_b32 v{WV+3}, 0xffff0000, v{RAW+3}
    """)
    a(f"""
    v_bfe_u32 v{TMP+2}, v{VLANE}, 4, 1
    v_lshlrev_b32 v{TMP+2}, 5, v{TMP+2}
    v_lshrrev_b32 v{TMP+3}, 5, v{VLANE}
    v_lshl_add_u32 v{TMP+2}, v{TMP+3}, 4, v{TMP+2}
    v_and_b32 v{TMP+3}, 15, v{VLANE}
    v_add_lshl_u32 v{TMP+2}, v{TMP+2}, v{TMP+3}, 2
    s_lshl_b32 s35, s7, 14
    s_lshl_b32 s36, s3, 12
    s_add_u32 s35, s35, s36
    s_lshl_b32 s36, s6, 9
    s_add_u32 s35, s35, s36
    s_lshl_b32 s35, s35, 2
    s_add_u32 s35, s35, {WS_PART}
    """)
    X = DAT; E = DAT + 8; S = DAT + 16
    for p in range(T // 2):
        for h in range(2):
            t = 2 * p + h
            for r in range(4):
                a(f"v_add_f32 v{X+4*h+r}, v{ACC+4*t+r}, v{BV+r}")
            for r in range(4):
                a(f"v_mul_f32 v{E+4*h+r}, v{X+4*h+r}, v{X+4*h+r}")
            for r in range(4):
                a(f"v_fma_f32 v{E+4*h+r}, v{E+4*h+r}, s33, v{TMP+1}")
            for r in range(4):
                a(f"v_mul_f32 v{E+4*h+r}, v{E+4*h+r}, v{X+4*h+r}")
            for r in range(4):
                a(f"v_exp_f32 v{E+4*h+r}, v{E+4*h+r}")
            for r in range(4):
                a(f"v_add_f32 v{E+4*h+r}, 1.0, v{E+4*h+r}")
            for r in range(4):
                a(f"v_rcp_f32 v{E+4*h+r}, v{E+4*h+r}")
            for r in range(4):
                a(f"v_mul_f32 v{X+4*h+r}, v{X+4*h+r}, v{WV+r}")
            a(f"v_mul_f32 v{S+h}, v{X+4*h}, v{E+4*h}")
            for r in range(1, 4):
                a(f"v_fma_f32 v{S+h}, v{X+4*h+r}, v{E+4*h+r}, v{S+h}")
        a("s_nop 1")
        a(f"v_permlane16_swap_b32 v{S}, v{S+1}")
        a("s_nop 1")
        a(f"v_add_f32 v{S+2+(p&1)}, v{S}, v{S+1}")
        a(f"buffer_store_dword v{S+2+(p&1)}, v{TMP+2}, s[12:15], s35 offen offset:{p*256}")
    a.label(f"{name}_end")
    a("s_endpgm")
    return NV

HEADER = """; Kernarg layout: idx(0) table(8) w_p(16) w1(24) b1(32) w2(40) b2(48) out(56) debug(64) ws(72)
"""

def build(kernels):
    a = Asm()
    descs = []
    head = HEADER
    for (name, fn, grid, block, lds) in kernels:
        head += f"; @launch kernel={name} grid=({grid},1,1) block=({block},1,1) lds={lds}\n"
    seen = set()
    for (name, fn, grid, block, lds) in kernels:
        if name in seen: continue
        seen.add(name)
        r = fn(a, name)
        if isinstance(r, tuple):
            descs.append(kernel_desc(name, r[0], accum=r[1]))
        else:
            descs.append(kernel_desc(name, r))
    s = head + '.amdgcn_target "amdgcn-amd-amdhsa--gfx950"\n.text\n' + a.text() + '.section .rodata,"a"\n' + "".join(descs)
    return s

if __name__ == "__main__":
    out = sys.argv[1]
    which = sys.argv[2] if len(sys.argv) > 2 else "k2"
    if which == "k2":
        s = build([("k2_gather_kernel", gen_k2, 256, 512, 2 * BUF_STRIDE)])
    open(out, "w").write(s)
```

```python
import sys, struct
from gen import Asm, kernel_header, kernel_desc, srd, build, f32bits, WS_BYTES

B, F, D, V, H = 16384, 100, 128, 1000, 512
SLS = 102656
WS_W1R = 0
WS_SCHED = 0x1000000
WS_PART = 0x1400000
WS_PNN = 0x1C00000
K2_LDS = 131072

STAMP = False
PMAP = False
import os
PSF = os.environ.get('PSF', '')
import os
PFD = int(os.environ.get('PFD', '2'))
PFSEL = 's_bfe_u32 s18, s33, 0x40002' if os.environ.get('PFFIX', '1') == '1' else 's_and_b32 s18, s33, 15'
K2PRIO = os.environ.get('K2PRIO', '')
import os
ABL = set(os.environ.get('ABL', '').split(','))
NOPF = os.environ.get('PF', '0') == '0'
WS_DBG = 0x3000000
WS_TABR = 0x0E00000
K2_LDS = 163840

SHF = int(os.environ.get("SHF", "2"))
PRE = SHF >= 8
class Cnt:
    def __init__(self): self.n = 0; self.tag = {}
    def issue(self, tag=None):
        self.n += 1
        if tag is not None: self.tag[tag] = self.n
    def after(self, tag):
        return self.n - self.tag[tag] if tag in self.tag else None

def gen_final(a, cnts, R, fstamp):
    ACC, SEL, IDX, VL16, VPW, TMP, DAT, SCH, NS, LSF = (R[k] for k in "ACC SEL IDX VL16 VPW TMP DAT SCH NS LSF".split())
    PK = os.environ.get("PK", "1") == "1"
    EPT = [int(x) for x in os.environ.get("EPT", "8,0").split(",")]
    TGAP = int(os.environ.get("TGAP", "3"))
    LAG = int(os.environ.get("LAG", "3"))
    S0 = 10 if SHF else 11
    BLK = int(os.environ.get("BLK", "0")); BULK = BLK > 0
    C2, C1, ONE, W01, W23 = 128, 130, 132, 134, 136
    EB = 140
    NB = 6
    if SHF:
        a(f"""
        s_add_u32 s40, s20, 61440
        s_add_u32 s41, s20, 65536
        s_add_u32 s44, s20, {61440+65536}
        s_add_u32 s45, s20, 131072
        """)
        SB = [[None, 20], [40, 41], [44, 45]]
    else:
        a(f"""
        s_add_u32 s18, s20, 4096
        s_add_u32 s40, s20, 65536
        s_add_u32 s41, s20, {65536+4096}
        """)
        SB = [[20, 18], [40, 41]]
    a(f"""
    s_lshl_b32 s28, s38, 16
    s_and_b32 s29, s38, 0xffff0000
    s_lshl_b32 s30, s39, 16
    s_and_b32 s31, s39, 0xffff0000
    s_lshl_b32 s35, s33, 16
    s_lshl_b32 s42, s34, 15
    s_add_u32 s35, s35, s42
    s_lshl_b32 s42, s3, 12
    s_add_u32 s35, s35, s42
    s_add_u32 s35, s35, {WS_PART}
    """)
    setup = [f"v_mov_b32 v{C2}, {f32bits(-0.1029432397):#x}", f"v_mov_b32 v{C2+1}, {f32bits(-0.1029432397):#x}",
             f"v_mov_b32 v{C1}, {f32bits(-2.302208198):#x}", f"v_mov_b32 v{C1+1}, {f32bits(-2.302208198):#x}",
             f"v_mov_b32 v{ONE}, 1.0", f"v_mov_b32 v{ONE+1}, 1.0"] + [f"v_mov_b32 v{W01+r}, s{28+r}" for r in range(4)] + \
            [f"v_lshrrev_b32 v{VPW}, 2, v{VL16}", f"v_and_b32 v{TMP}, 128, v{VPW}", f"v_add_u32 v{VPW}, v{VPW}, v{TMP}"]
    FW = os.environ.get("FW", "1") == "1" and PK
    if FW:
        setup += [f"v_rcp_f32 v{W01+r}, v{W01+r}" for r in range(4)] + [f"v_mov_b32 v{ONE}, 0x7f7fffff", f"v_mov_b32 v{ONE+1}, 0xff7fffff"] + \
                 [f"v_med3_f32 v{W01+r}, v{W01+r}, v{ONE}, v{ONE+1}" for r in range(4)]
    U = [(0, p) for p in range(LAG)]
    for p in range(8):
        U.append((1, p))
        if p + LAG < 8: U.append((0, p + LAG))
    if LAG == 0:
        U = [(0, 0), (0, 1), (0, 2), (1, 0), (1, 1), (1, 2)] + [(h, p) for p in range(3, 8) for h in range(2)]
    assert len(U) == 16 and U[:3] == [(0, 0), (0, 1), (0, 2)]
    if SHF:
        U = [(0, 1), (0, 2), (0, 3)] + [(h, p) for p in range(4) for h in (1, 2)] + [(h, p) for p in range(4, 8) for h in range(3)]
    if PRE:
        assert SHF == 8
        U = [(0, 4), (0, 5), (0, 6)] + [(h, p) for p in range(7) for h in (1, 2)] + [(0, 7), (1, 7), (2, 7)]
    NU = len(U); HL = 2 if SHF else 1
    def tile(n):
        if n < 0: return (16 + n + SHF) % 16, False
        hf, p = U[n >> 1]; return 2 * p + (n & 1), hf == HL
    pos = [0]
    def emit(txt):
        for l in txt.split("\n"):
            if l.strip(): a(l); pos[0] += 1
    def need(kind, tag):
        n = cnts[kind].after(tag)
        if n is not None: emit(f"s_waitcnt {kind}cnt({n})")
    ops = []
    def pr(x): return f"v[{x}:{x+1}]"
    lastuse = {}
    def add_tile(tt, smpos, k):
        X = ACC + 4 * tt; E = EB + 6 * (k % NB); Q = E + 4
        def o(text, deps, T=False, st=False):
            d = dict(text=text, T=T, deps=list(deps), done=None, ready=smpos + 12, st=st); ops.append(d); return d
        prev = lastuse.get(k % NB, [])
        ex = []; xw = []; rc = []
        for g in range(2):
            x = X + 2 * g; e = E + 2 * g; w = W01 + 2 * g
            if PK:
                m1 = o(f"v_pk_mul_f32 {pr(e)}, {pr(x)}, {pr(x)}", [(p_, 1) for p_ in prev])
                m2 = o(f"v_pk_fma_f32 {pr(e)}, {pr(e)}, {pr(C2)}, {pr(C1)}", [(m1, 2)])
                m3 = o(f"v_pk_mul_f32 {pr(e)}, {pr(e)}, {pr(x)}", [(m2, 2)])
                e0 = o(f"v_exp_f32 v{e}, v{e}", [(m3, 2)], T=True)
                e1 = o(f"v_exp_f32 v{e+1}, v{e+1}", [(m3, 2)], T=True)
                if FW:
                    m4 = m3
                    m5 = o(f"v_pk_fma_f32 {pr(e)}, {pr(e)}, {pr(w)}, {pr(w)}", [(e0, 3), (e1, 3)])
                else:
                    m4 = o(f"v_pk_mul_f32 {pr(x)}, {pr(x)}, {pr(w)}", [(m3, 1)])
                    m5 = o(f"v_pk_add_f32 {pr(e)}, {pr(e)}, {pr(ONE)}", [(e0, 3), (e1, 3)])
                r0 = o(f"v_rcp_f32 v{e}, v{e}", [(m5, 2)], T=True)
                r1 = o(f"v_rcp_f32 v{e+1}, v{e+1}", [(m5, 2)], T=True)
                xw.append(m4); rc += [r0, r1]
            else:
                for u in range(2):
                    m1 = o(f"v_mul_f32 v{e+u}, v{x+u}, v{x+u}", [(p_, 1) for p_ in prev])
                    m2 = o(f"v_fma_f32 v{e+u}, v{e+u}, v{C2}, v{C1}", [(m1, 2)])
                    m3 = o(f"v_mul_f32 v{e+u}, v{e+u}, v{x+u}", [(m2, 2)])
                    e0 = o(f"v_exp_f32 v{e+u}, v{e+u}", [(m3, 2)], T=True)
                    m4 = o(f"v_mul_f32 v{x+u}, v{x+u}, v{w+u}", [(m3, 1)])
                    m5 = o(f"v_add_f32 v{e+u}, 1.0, v{e+u}", [(e0, 3)])
                    r0 = o(f"v_rcp_f32 v{e+u}, v{e+u}", [(m5, 2)], T=True)
                    xw.append(m4); rc.append(r0)
        if PK:
            q0 = o(f"v_pk_mul_f32 {pr(Q)}, {pr(X)}, {pr(E)}", [(xw[0], 2), (rc[0], 3), (rc[1], 3)] + [(p_, 1) for p_ in prev])
            q1 = o(f"v_pk_fma_f32 {pr(Q)}, {pr(X+2)}, {pr(E+2)}, {pr(Q)}", [(xw[1], 2), (rc[2], 3), (rc[3], 3), (q0, 2)])
            q2 = o(f"v_add_f32 v{Q}, v{Q}, v{Q+1}", [(q1, 2)])
        else:
            q2 = o(f"v_mul_f32 v{Q}, v{X}, v{E}", [(xw[0], 2), (rc[0], 3)] + [(p_, 1) for p_ in prev])
            for r in range(1, 4):
                q2 = o(f"v_fma_f32 v{Q}, v{X+r}, v{E+r}, v{Q}", [(xw[r], 2), (rc[r], 3), (q2, 2)])
        st = o(f"buffer_store_dword v{Q}, v{VPW}, s[12:15], s35 offen offset:{(tt>>1)*512+(tt&1)*128}{PSF}" if not os.environ.get("NOST") else "s_nop 0", [(q2, 2)], st=not os.environ.get("NOST"))
        lastuse[k % NB] = [st]
    lastT = [-100]
    def ok(o_):
        return o_["done"] is None and pos[0] >= o_["ready"] and all(d["done"] is not None and pos[0] - d["done"] >= dist for d, dist in o_["deps"])
    def epi(n, force=False):
        while n > 0:
            if setup:
                emit(setup.pop(0)); n -= 1; continue
            cand = [o_ for o_ in ops if ok(o_)]
            if not cand:
                if force and any(o_["done"] is None for o_ in ops): emit("s_nop 0"); continue
                return
            tc = [o_ for o_ in cand if o_["T"]]; nc = [o_ for o_ in cand if not o_["T"]]
            if tc and (pos[0] - lastT[0] >= TGAP or not nc): c = tc[0]
            else: c = nc[0]
            c["done"] = pos[0]
            if c["T"]: lastT[0] = pos[0]
            emit(c["text"])
            if c["st"]: cnts["vm"].issue(None)
            n -= 1
    kk = 0
    FPRI = [int(x) for x in os.environ.get("FPRI", "24,38,46").split(",") if x]
    FL = int(os.environ.get("FL", "2"))
    J0 = 16 * S0 + SHF
    ring = [DAT + 8 * (J0 % 3)] + [224 + 8 * i for i in range(FL - 2)] + [DAT + 8 * ((J0 + 1) % 3), DAT + 8 * ((J0 + 2) % 3)]
    assert not (BULK and FL > 2 and SHF)
    def dbuf(n): return ring[n % (FL + 1)]
    for n in range(2 * NU + FL):
        J = 16 * S0 + SHF + n
        if FPRI and n == 0: emit(f"s_setprio {len(FPRI)}")
        if n in FPRI: emit(f"s_setprio {len(FPRI) - 1 - FPRI.index(n)}")
        if n < 2 * NU:
            sreg = SCH + 4 * ((J >> 1) % NS) + 2 * (J & 1)
            if BULK and n >= 2 * NS: sreg = 176 + 4 * ((n >> 1) - NS) + 2 * (J & 1)
            d = dbuf(n)
            for hh in range(2):
                if BULK:
                    for q in range(NS + BLK * (2 * n + hh), min(NU, NS + BLK * (2 * n + hh + 1))):
                        hf, p = U[q]; sb = SB[hf][p >> 2]; slot = 176 + 4 * (q - NS)
                        emit(f"buffer_load_dwordx4 v[{slot}:{slot+3}], v{VL16}, s[12:15], s{sb} offen offset:{(p&3)*1024}{LSF}")
                        cnts["vm"].issue(("s", 8 * S0 + SHF // 2 + q))
                epi(EPT[hh])
                if hh == 0 and J % 2 == 0: need("vm", ("s", J >> 1))
                for h in (2 * hh, 2 * hh + 1):
                    emit(f"v_lshlrev_b32_sdwa v{d+2*h}, 3, v{sreg+(h>>1)} dst_sel:DWORD dst_unused:UNUSED_PAD src0_sel:DWORD src1_sel:WORD_{h&1}")
                for h in (2 * hh, 2 * hh + 1):
                    emit(f"ds_read_b64 v[{d+2*h}:{d+2*h+1}], v{d+2*h}")
                    cnts["lgkm"].issue(("r", J))
            if n % 2 == 1 and (n >> 1) + NS < NU and not BULK:
                Pn = (J >> 1) + NS; slot = SCH + 4 * (Pn % NS)
                hf, p = U[(n >> 1) + NS]
                sb = SB[hf][p >> 2]
                emit(f"buffer_load_dwordx4 v[{slot}:{slot+3}], v{VL16}, s[12:15], s{sb} offen offset:{(p&3)*1024}{LSF}")
                cnts["vm"].issue(("s", Pn))
        else: epi(EPT[0] + EPT[1])
        if n - FL < -2: continue
        t = J - FL; dt = dbuf(n - FL); tt, hf = tile(n - FL)
        need("lgkm", ("r", t))
        emit(f"v_smfmac_f32_16x16x64_bf16 v[{ACC+4*tt}:{ACC+4*tt+3}], v[{SEL}:{SEL+3}], v[{dt}:{dt+7}], v{IDX}")
        if hf:
            add_tile(tt, pos[0], kk); kk += 1
    if os.environ.get("ESTAMP"): fstamp(3)
    left = sum(o_["done"] is None for o_ in ops)
    print("final: epilogue ops left after gather:", left, file=sys.stderr)
    epi(10000, force=True)
    assert all(o_["done"] is not None for o_ in ops) and kk == 16

def gen_k2(a, name, fstamp, fstamp_out, MT):
    ACC = 0; SEL = 64; IDX = 68; VL16 = 69; VPW = 70; TMP = 71
    W = 72; DAT = 88; PB = 112; SCH = 116
    NS = 3
    LSF = os.environ.get("LSF", " sc1")
    def rstamp(): pass
    def stamp(fixed=None): return False
    def T(i, ks): return f"v[{128+16*i+4*ks}:{128+16*i+4*ks+3}]"
    def wld(reg, ks, sf): return f"buffer_load_dwordx4 v[{reg}:{reg+3}], v{VL16}, s[12:15], s{21 if ks < 2 else 19} offen offset:{(ks&1)*1024}{sf}"
    WINC = "s_add_u32 s21, s21, 4096\ns_add_u32 s19, s19, 4096"
    a.label(f"{name}_k2")
    L = 0
    a(f"""
    s_setprio 0
    s_load_dwordx4 s[8:11], s[0:1], 32
    v_mbcnt_lo_u32_b32 v{L}, -1, 0
    v_mbcnt_hi_u32_b32 v{L}, -1, v{L}
    s_mul_i32 s35, s3, {128*144}
    v_and_b32 v{L+1}, 15, v{L}
    v_lshrrev_b32 v{L+2}, 4, v{L}
    v_mul_u32_u24 v{TMP}, 144, v{L+1}
    v_lshl_add_u32 v{TMP}, v{L+2}, 4, v{TMP}
    v_add_u32 v{TMP}, s35, v{TMP}
    """)
    for i in range(8):
        for ks in range(2):
            a(f"ds_read_b128 {T(i,ks)}, v{TMP} offset:{2304*i+64*ks}")
    a(f"""
    s_lshr_b32 s33, s2, 1
    s_and_b32 s34, s2, 1
    s_mov_b32 s32, 0x8000
    v_lshlrev_b32 v{VL16}, 4, v{L}
    s_mul_i32 s21, s33, {SLS}
    s_lshl_b32 s35, s50, 11
    s_xor_b32 s19, s35, 2048
    s_add_u32 s19, s19, s21
    s_add_u32 s21, s21, s35
    s_mul_i32 s20, s34, {25*65536}
    s_add_u32 s20, s20, {WS_SCHED}
    s_lshl_b32 s35, s3, 13
    s_add_u32 s20, s20, s35
    v_lshlrev_b32 v{VPW}, 13, v{L+2}
    v_lshl_add_u32 v{VPW}, v{L+1}, 3, v{VPW}
    s_lshl_b32 s35, s3, 10
    v_add_u32 v{VPW}, s35, v{VPW}
    v_lshrrev_b32 v{L+4}, 3, v{L}
    v_xor_b32 v{L+4}, v{L+4}, v{L+2}
    v_and_b32 v{L+4}, 1, v{L+4}
    v_bfe_u32 v{L+5}, v{L}, 2, 1
    v_lshl_or_b32 v{L+4}, v{L+4}, 1, v{L+5}
    v_mov_b32 v{L+6}, 0x3f80
    v_cmp_eq_u32 vcc, 0, v{L+4}
    s_nop 1
    v_cndmask_b32 v{SEL}, 0, v{L+6}, vcc
    v_cndmask_b32 v{SEL+1}, 0, v{L+6}, vcc
    v_cmp_eq_u32 vcc, 1, v{L+4}
    s_nop 1
    v_cndmask_b32 v{SEL+2}, 0, v{L+6}, vcc
    v_cndmask_b32 v{SEL+3}, 0, v{L+6}, vcc
    v_and_b32 v{L+5}, 3, v{L}
    v_mul_u32_u24 v{IDX}, 0x5555, v{L+5}
    """)
    def wl(base):
        for ks in range(4): a(wld(base + 4 * ks, ks, " sc1"))
        a(WINC)
    def first_loads():
        wl(0); wl(16)
        if SHF: a("s_mov_b32 s44, s21\ns_mov_b32 s45, s19\n" + WINC)
        if not PRE: wl(W)
        sched_load(0); sched_load(1)
    fillers = []
    def pphase(wb, first_waits=None, off=0, f0=1):
        for i in range(10):
            if i < 8:
                if first_waits is not None:
                    a(f"s_waitcnt vmcnt({first_waits(i)})")
                pb = DAT + 4 * (i % 3)
                for ks in range(4):
                    c = "0" if ks == 0 else f"v[{pb}:{pb+3}]"
                    a(f"v_mfma_f32_16x16x32_bf16 v[{pb}:{pb+3}], v[{wb+4*ks}:{wb+4*ks+3}], {T(i,ks)}, {c}")
                    if fillers and i >= f0: a(fillers.pop(0))
            if i >= 2:
                t = i - 2
                pb = DAT + 4 * (t % 3); cv = DAT + 12 + 2 * (t & 1)
                if i == 9: a("s_nop 1")
                a(f"v_cvt_pk_bf16_f32 v{cv}, v{pb}, v{pb+1}")
                a(f"v_cvt_pk_bf16_f32 v{cv+1}, v{pb+2}, v{pb+3}")
                a(f"ds_write_b64 v{VPW}, v[{cv}:{cv+1}] offset:{t*128+off}")
        a(f"v_add_u32 v{VPW}, 0x8000, v{VPW}")
    def sched_load(Pp):
        t = Pp % 8
        slot = SCH + 4 * (Pp % NS)
        a(f"buffer_load_dwordx4 v[{slot}:{slot+3}], v{VL16}, s[12:15], s20 offen offset:{(t&3)*1024} sc1")
        if t == 3: a("s_add_u32 s20, s20, 4096")
        if t == 7: a("s_add_u32 s20, s20, 61440")
    a(f"s_cmp_lt_u32 s3, 4\ns_cbranch_scc1 {name}_k2n")
    first_loads()
    a.label(f"{name}_k2n")
    a(f"""
    s_and_b32 s35, s3, 3
    s_lshl_b32 s35, s35, 14
    s_add_u32 s35, s35, 98304
    v_add_u32 v{TMP}, s35, v{VL16}
    s_lshl_b32 s35, s33, 3
    s_waitcnt lgkmcnt(0)
    s_add_u32 s8, s8, s35
    s_addc_u32 s9, s9, 0
    s_add_u32 s10, s10, s35
    s_addc_u32 s11, s11, 0
    s_barrier
    """)
    fstamp(4)
    a(f"""
    s_load_dwordx2 s[36:37], s[8:9], 0
    s_load_dwordx2 s[38:39], s[10:11], 0
    s_cmp_lt_u32 s3, 4
    s_cbranch_scc1 {name}_k2m
    """)
    TR2 = os.environ.get("TR2", "1") == "1" and SHF
    pend = []
    def pphase2(wb, off, drain):
        for p in range(4):
            for ks in range(4):
                for u in range(2):
                    a(mf(DAT + 8 * (pc[0] % 3) + 4 * u, wb, 2 * p + u, ks, ks == 0))
                    if ks >= 1 and pend: a(pend.pop(0))
                    if fillers and (p or ks >= 2): a(fillers.pop(0))
            assert not pend
            for u in range(2): pend.extend(fin(DAT + 8 * (pc[0] % 3) + 4 * u, 2 * p + u, off))
            pc[0] += 1
        if drain:
            while fillers: a(fillers.pop(0))
            a("s_nop 7")
            while pend: a(pend.pop(0))
    pc = [0]
    TST = os.environ.get("TSTAMP")
    def ini(r0, r1): return [f"v_mov_b32 v{ACC+i}, s{24+(i&3)}" for i in range(r0, r1)]
    def w2ld(r):
        for ks in range(4): a(f"buffer_load_dwordx4 v[{r+4*ks}:{r+3+4*ks}], v{VL16}, s[12:15], s{44 if ks < 2 else 45} offen offset:{(ks&1)*1024} sc1")
    BIAS = """
        s_lshl_b32 s24, s36, 16
        s_and_b32 s25, s36, 0xffff0000
        s_lshl_b32 s26, s37, 16
        s_and_b32 s27, s37, 0xffff0000
        """
    def mf(pb, wb, i, ks, zero): return f"v_mfma_f32_16x16x32_bf16 v[{pb}:{pb+3}], v[{wb+4*ks}:{wb+4*ks+3}], {T(i,ks)}, {'0' if zero else f'v[{pb}:{pb+3}]'}"
    def fin(pb, t, off): return [f"v_cvt_pk_bf16_f32 v{pb}, v{pb}, v{pb+1}", f"v_cvt_pk_bf16_f32 v{pb+1}, v{pb+2}, v{pb+3}", f"ds_write_b64 v{VPW}, v[{pb}:{pb+1}] offset:{t*128+off}"]
    assert TR2
    if TR2:
        assert MT[:8] == [32 + 4 * i for i in range(8)]
        a(f"s_waitcnt vmcnt({6 if PRE else 10})")
        def mtw(q): a(f"ds_write_b128 v{TMP}, v[{MT[q]}:{MT[q]+3}] offset:{1024*q}")
        for q in range(4): mtw(q)
        BPOS = int(os.environ.get("BPOS", "28"))
        c = 0
        for g in range(2):
            for ks in range(4):
                for i in range(4 * g, 4 * g + 4):
                    a(mf(32 + 4 * i, 0, i, ks, ks == 0)); c += 1
                    if c % 2 == 0 and 3 + c // 2 < 16: mtw(3 + c // 2)
                    if c == BPOS: a("s_waitcnt lgkmcnt(0)\ns_barrier")
        sched_load(2)
        if PRE:
            a("s_waitcnt vmcnt(3)" + BIAS)
            fl = [x for t in range(8) for x in fin(32 + 4 * t, t, 0)]
            for ks in range(4):
                fl[12 + ks] += f"\nbuffer_load_dwordx4 v[{32+4*ks}:{35+4*ks}], v{VL16}, s[12:15], s{44 if ks < 2 else 45} offen offset:{(ks&1)*1024} sc1"
            i0 = ini(0, 16)
            for k_ in range(16): fl[k_ + 4] += "\n" + i0[k_]
            fillers += fl + ["s_nop 0"] * 4 + ini(48, 64) + ini(16, 32)
            pphase2(16, 0x8000, True)
            a(f"v_add_u32 v{VPW}, 0x10000, v{VPW}")
        else:
            w2ld(0)
            a("s_waitcnt vmcnt(11)" + BIAS)
            if TST: fstamp(5)
            fillers += [x for t in range(8) for x in fin(32 + 4 * t, t, 0)]
            pphase2(16, 0x8000, False)
            assert not fillers
            a(f"v_add_u32 v{VPW}, 0x8000, v{VPW}\ns_waitcnt vmcnt(0)")
            pend[:] = [x.replace(f"offset:{t*128+0x8000}", f"offset:{t*128}") for x in pend for t in (6, 7) if "offset" not in x and t == 6 or f"offset:{t*128+0x8000}" in x]
            fillers += [x + "\n" + y for x, y in zip(ini(16, 40), ini(40, 64))] + ["s_nop 0"] * 4 + ini(0, 16)
            pphase2(0, 0x8000, True)
            a(f"v_add_u32 v{VPW}, 0x10000, v{VPW}")
        a(f"s_branch {name}_k2j")
        a.label(f"{name}_k2m")
        first_loads()
        sched_load(2)
        w2ld(32)
        PBM = [48 + 4 * i for i in range(4)] + [DAT + 4 * i for i in range(4)]
        MPB = os.environ.get("MPB", "0") == "1"
        def own():
            a(f"s_waitcnt vmcnt({11 if PRE else 15})")
            for ks in range(2):
                for i in range(8): a(mf(PBM[i], 0, i, ks, ks == 0))
        if MPB: own()
        a("s_waitcnt lgkmcnt(0)\ns_barrier")
        for q in range(16):
            a(f"ds_read_b128 {T(q>>1, 2+(q&1))}, v{TMP} offset:{1024*q}")
        if not MPB: own()
        a(BIAS)
        if TST: fstamp(5)
        nw = 0
        for i in range(0, 12, 2):
            if i < 8:
                a(f"s_waitcnt lgkmcnt({12 - 2 * i + nw})")
                for ks in (2, 3):
                    for u in range(2): a(mf(PBM[i + u], 0, i + u, ks, False))
            else: a("s_nop 3")
            if i >= 4:
                for u in range(2):
                    for l in fin(PBM[i - 4 + u], i - 4 + u, 0): a(l)
                    nw += 1
        a(f"v_add_u32 v{VPW}, 0x8000, v{VPW}\ns_waitcnt vmcnt({7 if PRE else 11})")
        fillers += ini(48, 64) + ini(0, 12)
        pc[0] = 2
        if PRE:
            fillers += ini(12, 32)
            pphase2(16, 0, True)
            a(f"v_add_u32 v{VPW}, 0x8000, v{VPW}")
        else:
            pphase2(16, 0, False)
            a("s_waitcnt vmcnt(0)")
            fillers += ini(12, 32) + ["s_nop 0"] * 8 + ini(32, 48)
            pphase2(32, 0x8000, True)
            a(f"v_add_u32 v{VPW}, 0x10000, v{VPW}")
        a.label(f"{name}_k2j")
    else:
        for q in range(16):
            a(f"ds_write_b128 v{TMP}, v[{MT[q]}:{MT[q]+3}] offset:{1024*q}")
        a(f"""
        s_waitcnt lgkmcnt(0)
        s_barrier
        s_branch {name}_k2j
        """)
        a.label(f"{name}_k2m")
        a("s_barrier")
        for q in range(16):
            a(f"ds_read_b128 {T(q>>1, 2+(q&1))}, v{TMP} offset:{1024*q}")
        a.label(f"{name}_k2j")
        sched_load(2)
    if SHF and not TR2:
        for ks in range(4): a(f"buffer_load_dwordx4 v[{32+4*ks}:{35+4*ks}], v{VL16}, s[12:15], s{44 if ks < 2 else 45} offen offset:{(ks&1)*1024} sc1")
        a(f"""
        s_waitcnt vmcnt(15) lgkmcnt(0)
        s_lshl_b32 s24, s36, 16
        s_and_b32 s25, s36, 0xffff0000
        s_lshl_b32 s26, s37, 16
        s_and_b32 s27, s37, 0xffff0000
        """)
        if TST: fstamp(5)
        fillers += ini(48, 64)
        pphase(0)
        a("s_waitcnt vmcnt(11)")
        fillers += ini(0, 16)
        pphase(16)
        a("s_waitcnt vmcnt(0)")
        fillers += ini(16, 32)
        pphase(32)
        assert not fillers
        for l in ini(32, 48): a(l)
    if SHF:
        if TST: fstamp(1)
        a(f"""
        s_mov_b32 s22, 0
        s_mov_b32 s23, {2 if PRE else 3}
        s_waitcnt {"vmcnt(0) " if PRE else ""}lgkmcnt(0)
        s_barrier
        """)
        fstamp(6)
        for J in range(0 if PRE else 2):
            d = DAT + 8 * J
            for h in range(4):
                a(f"v_lshlrev_b32_sdwa v{d+2*h}, 3, v{SCH+2*J+(h>>1)} dst_sel:DWORD dst_unused:UNUSED_PAD src0_sel:DWORD src1_sel:WORD_{h&1}")
            for h in range(4):
                a(f"ds_read_b64 v[{d+2*h}:{d+2*h+1}], v{d+2*h}")
        if not PRE: sched_load(3)
    else:
        a("s_waitcnt vmcnt(11) lgkmcnt(0)")
        pphase(0)
        a("s_waitcnt vmcnt(7)")
        pphase(16)
    PRIOTXT = ""
    if K2PRIO == "hi": PRIOTXT = f"s_cmp_lt_u32 s3, 4\ns_cbranch_scc1 {name}_np\ns_setprio 1\n{name}_np:"
    if K2PRIO == "lo": PRIOTXT = f"s_cmp_ge_u32 s3, 4\ns_cbranch_scc1 {name}_np\ns_setprio 1\n{name}_np:"
    FIN = os.environ.get("FIN", "1") == "1"
    if not SHF:
        if FIN:
            a(f"""
            s_lshl_b32 s24, s36, 16
            s_and_b32 s25, s36, 0xffff0000
            s_lshl_b32 s26, s37, 16
            s_and_b32 s27, s37, 0xffff0000
            s_nop 3
            """)
        else: a("s_nop 7")
        for i in range(64):
            a(f"v_mov_b32 v{ACC+i}, {f's{24+(i&3)}' if FIN else 0}")
        for i in range(24):
            a(f"v_mov_b32 v{DAT+i}, 0")
        a(f"""
        s_mov_b32 s22, 0
        s_mov_b32 s23, 2
        {PRIOTXT}
        s_waitcnt vmcnt(0) lgkmcnt(0)
        s_barrier
        """)
        fstamp(6)
    vm = Cnt(); lg = Cnt(); uid = [0]
    cnts = {"vm": vm, "lgkm": lg}
    log = []
    RATE = float(os.environ.get("RATE", "1.9")); START = int(os.environ.get("START", "2")); GAP = int(os.environ.get("GAP", "2"))
    SMPOS = int(os.environ.get("SMPOS", "4"))
    LPRI = [int(x) for x in os.environ.get("LPRI", "8,12,15").split(",") if x]
    def op(text, kind="x", needs=(), issues=None):
        return dict(text=text, kind=kind, needs=list(needs), issues=issues)
    def build_step(S, last):
        G = []
        pre_ = S < 0
        j0 = 16 - SHF if pre_ else 0
        WB = 32 if pre_ else W
        for j in range(j0, 16 + (2 if last else 0)):
            J = 16 * S + j + SHF
            t = J - 2; dt = DAT + 8 * (t % 3); tt = t % 16
            smop = op(f"v_smfmac_f32_16x16x64_bf16 v[{ACC+4*tt}:{ACC+4*tt+3}], v[{SEL}:{SEL+3}], v[{dt}:{dt+7}], v{IDX}" if "nosm" not in ABL else "", "sm", [("lgkm", ("r", t))])
            if t < 0: smop = op("", "sm")
            if j < 16:
                sreg = SCH + 4 * ((J >> 1) % NS) + 2 * (J & 1)
                d = DAT + 8 * (J % 3)
                for h in range(4):
                    if h == SMPOS: G.append(smop)
                    G.append(op(f"v_lshlrev_b32_sdwa v{d+2*h}, 3, v{sreg+(h>>1)} dst_sel:DWORD dst_unused:UNUSED_PAD src0_sel:DWORD src1_sel:WORD_{h&1}",
                                "va", [("vm", ("s", J >> 1))] if (h == 0 and J % 2 == 0 and "nos" not in ABL) else []))
                    G.append(op(f"ds_read_b64 v[{d+2*h}:{d+2*h+1}], v{d+2*h}" if "nor" not in ABL else "", "rd", [], ("lgkm", ("r", J)) if "nor" not in ABL else None))
                if J % 2 == 1 and not (last and (j >> 1) + NS >= 8) and "nos" not in ABL:
                    Pn = (J >> 1) + NS
                    tq = Pn % 8; slot = SCH + 4 * (Pn % NS)
                    txt = f"buffer_load_dwordx4 v[{slot}:{slot+3}], v{VL16}, s[12:15], s20 offen offset:{(tq&3)*1024}{LSF}"
                    if tq == 3: txt += "\ns_add_u32 s20, s20, 4096"
                    if tq == 7: txt += "\ns_add_u32 s20, s20, 61440"
                    G.append(op(txt, "vl", [], ("vm", ("s", Pn))))
            if SMPOS >= 4 or j >= 16: G.append(smop)
        if last: return G
        P = []
        for i in range(8):
            for ks in range(4):
                c = "0" if ks == 0 else f"v[{PB}:{PB+3}]"
                grp = [op(f"v_mfma_f32_16x16x32_bf16 v[{PB}:{PB+3}], v[{WB+4*ks}:{WB+4*ks+3}], {T(i,ks)}, {c}" if "nop" not in ABL else "",
                          "m3" if ks == 3 else "m", [("vm", ("w", S, ks))] if (i == 0 and "now" not in ABL) else [])]
                kw = ks if (i == 7 and not pre_) else (2 * (i - 4) + (ks >> 1) if (pre_ and i in (4, 5) and ks % 2 == 0) else None)
                if kw is not None and "now" not in ABL:
                    txt = wld(W + 4 * kw, kw, LSF)
                    if kw == 3: txt += "\n" + WINC
                    grp.append(op(txt, "vl", [], ("vm", ("w", S + 1, kw))))
                P.append(grp)
            for g in range(GAP): P.append([])
            P.append([op(f"v_cvt_pk_bf16_f32 v{PB}, v{PB}, v{PB+1}", "cv")])
            P.append([op(f"v_cvt_pk_bf16_f32 v{PB+1}, v{PB+2}, v{PB+3}", "va")])
            P.append([op(f"ds_write_b64 v{VPW}, v[{PB}:{PB+1}] offset:{i*128}" if "nodw" not in ABL else "", "dw", [], ("lgkm", ("pw", S, i)) if "nodw" not in ABL else None)])
        P.append([op(f"""s_add_u32 s23, s23, 1
            s_cmp_eq_u32 s23, 5
            s_cselect_b32 s35, {(-131072) & 0xffffffff}, s32
            s_cselect_b32 s23, 0, s23
            v_add_u32 v{VPW}, s35, v{VPW}""", "va")])
        if "nopf" not in ABL and not NOPF:
            P.append([op("PF", "pf")])
        ORDER = os.environ.get("ORDER", "1sfsfssfs")
        if pre_:
            ORDER = "8ffffffff"
            P.append([op("\n".join(ini(32, 48)), "va")])
        if ORDER:
            flat = [p for p in P if p]
            tilesP = [flat[7 * i:7 * i + 7] for i in range(8)]; tail = flat[56:]
            pre = {}; post = {}
            j = int(ORDER[0])
            for i, c in enumerate(ORDER[1:]):
                m = tilesP[i]
                if c == "f":
                    pre[(j, 0)] = m[0] + m[1]; pre[(j, 1)] = m[2] + m[3]; post[j] = m[4] + m[5] + m[6]; j += 1
                else:
                    pre[(j, 0)] = m[0]; pre[(j, 1)] = m[1]; pre[(j + 1, 0)] = m[2]; pre[(j + 1, 1)] = m[3]; post[j + 1] = m[4] + m[5] + m[6]; j += 2
            assert j <= 16
            post[j - 1] = post[j - 1] + [x for t_ in tail for x in t_]
            out = []
            gi = 0
            for jj in range(j0, 16):
                va = []; rd = []; vl = []; sm = None
                while True:
                    g = G[gi]; gi += 1
                    if g["kind"] == "va": va.append(g)
                    elif g["kind"] == "rd": rd.append(g)
                    elif g["kind"] == "vl": vl.append(g)
                    elif g["kind"] == "sm": sm = g; break
                if LPRI and jj == 0: out.append(op(f"s_setprio {len(LPRI)}", "x"))
                if jj in LPRI: out.append(op(f"s_setprio {len(LPRI) - 1 - LPRI.index(jj)}", "x"))
                out += pre.get((jj, 0), []) + va[0:2] + rd[0:2] + pre.get((jj, 1), []) + va[2:4] + rd[2:4] + vl + [sm] + post.get(jj, [])
            assert gi == len(G)
            if "nobar" not in ABL: out.append(op("s_barrier", "bar", [("lgkm", ("pw", S, 7))] if "nodw" not in ABL else []))
            return out
        out = []
        k = 0
        for gi, g in enumerate(G):
            out.append(g)
            while k < len(P) and gi >= START + k * RATE:
                ism = P[k] and P[k][0]["kind"] in ("m", "m3")
                nxt = G[gi + 1]["kind"] if gi + 1 < len(G) else None
                if ism and (g["kind"] == "sm" or nxt == "sm") and gi + 1 < len(G): break
                out.extend(P[k]); k += 1
        while k < len(P):
            out.extend(P[k]); k += 1
        if "nobar" not in ABL:
            out.append(op("s_barrier", "bar", [("lgkm", ("pw", S, 7))] if "nodw" not in ABL else []))
        return out
    since_m3 = [100]
    def emit_line(txt):
        for l in txt.split("\n"):
            if l.strip():
                a(l); since_m3[0] += 1
    def step(S, emit, last=False, waits=None):
        for o in build_step(S, last):
            for kind, tag in o["needs"]:
                n = cnts[kind].after(tag)
                log.append((kind, n))
                if waits is not None:
                    k2, n2 = next(waits)
                    assert k2 == kind and (n is None or n2 <= n), (kind, tag, n, n2)
                    n = n2
                if emit and n is not None:
                    emit_line(f"s_waitcnt {kind}cnt({n})")
            if emit:
                if o["kind"] == "pf":
                    uid[0] += 1
                    emit_line(f"""s_cmp_gt_u32 s3, 1
                    s_cbranch_scc1 {name}_pf{uid[0]}
                    v_lshlrev_b32 v{TMP}, 2, v{VL16}
                    s_cmp_eq_u32 s3, 0
                    s_cselect_b32 s19, s21, s18
                    buffer_load_dword v{TMP}, v{TMP}, s[12:15], s19 offen""")
                    a.label(f"{name}_pf{uid[0]}")
                    emit_line("s_add_u32 s18, s18, 65536")
                else:
                    if o["kind"] == "cv" and since_m3[0] < 8:
                        emit_line(f"s_nop {7 - since_m3[0]}"); print("nop inserted", file=sys.stderr)
                    emit_line(o["text"])
                    if o["kind"] == "m3": since_m3[0] = 0
            if o["issues"]: cnts[o["issues"][0]].issue(o["issues"][1])
            if o["kind"] == "bar":
                if emit: stamp()
                if STAMP: vm.issue(None)
    for S in range(3): step(S, False)
    log.clear()
    for S in range(3, 6): step(S, False)
    steady = list(log); log.clear()
    for S in range(6, 9): step(S, False)
    assert steady == log
    assert all(n is not None for _, n in steady) or ABL != {""}
    if PRE:
        keep = dict(cnts); cnts["vm"] = Cnt(); cnts["lgkm"] = Cnt()
        step(-1, True)
        it = iter(steady)
        for S in range(3): step(S, False, waits=it)
        cnts.update(keep)
    a.label(f"{name}_gloop")
    it = iter(steady)
    if FIN:
        import copy
        for S in range(9, 10 if SHF else 11): step(S, True, waits=it)
        snap = copy.deepcopy(cnts)
        a(f"""
        s_cmp_eq_u32 s22, 7
        s_cbranch_scc1 {name}_fin
        """)
        for S in range(10 if SHF else 11, 12): step(S, True, waits=it)
        a(f"""
        s_add_u32 s22, s22, 1
        s_branch {name}_gloop
        """)
        a.label(f"{name}_fin")
        if os.environ.get("ESTAMP"): fstamp(4)
        cnts.update(snap)
        gen_final(a, cnts, dict(ACC=ACC, SEL=SEL, IDX=IDX, VL16=VL16, VPW=VPW, TMP=TMP, DAT=DAT, SCH=SCH, NS=NS, LSF=LSF), fstamp)
        fstamp(7)
        fstamp_out(VL16)
        return
    for S in range(9, 12): step(S, True, waits=it)
    a(f"""
    s_add_u32 s22, s22, 1
    s_cmp_lt_u32 s22, 8
    s_cbranch_scc1 {name}_gloop
    """)
    if os.environ.get("ESTAMP"): fstamp(4)
    step(12, True, last=True)
    PMAPTXT = f"v_lshrrev_b32 v{VPW}, 2, v{VL16}"
    if PMAP: PMAPTXT += f"\nv_and_b32 v{DAT}, 128, v{VPW}\nv_add_u32 v{VPW}, v{VPW}, v{DAT}"
    a.label(f"{name}_epi")
    a('s_nop 7')
    if os.environ.get("ESTAMP"): fstamp(3)
    rstamp()
    stamp()
    a(f"""
    s_lshl_b32 s24, s36, 16
    s_and_b32 s25, s36, 0xffff0000
    s_lshl_b32 s26, s37, 16
    s_and_b32 s27, s37, 0xffff0000
    s_lshl_b32 s28, s38, 16
    s_and_b32 s29, s38, 0xffff0000
    s_lshl_b32 s30, s39, 16
    s_and_b32 s31, s39, 0xffff0000
    s_mov_b32 s40, {f32bits(-0.1029432397):#x}
    s_mov_b32 s41, {f32bits(-2.302208198):#x}
    s_waitcnt vmcnt(0)
    v_mov_b32 v{TMP}, s41
    {PMAPTXT}
    s_lshl_b32 s35, s33, 16
    s_lshl_b32 s42, s34, 15
    s_add_u32 s35, s35, s42
    s_lshl_b32 s42, s3, 12
    s_add_u32 s35, s35, s42
    s_add_u32 s35, s35, {WS_PART}
    """)
    for tp in range(8):
        X = DAT; E = DAT + 8; S = W + 2 * (tp & 1)
        for h in range(2):
            t = 2 * tp + h
            for r in range(4): a(f"v_add_f32 v{X+4*h+r}, s{24+r}, v{ACC+4*t+r}")
        for r in range(8): a(f"v_mul_f32 v{E+r}, v{X+r}, v{X+r}")
        for r in range(8): a(f"v_fma_f32 v{E+r}, v{E+r}, s40, v{TMP}")
        for r in range(8): a(f"v_mul_f32 v{E+r}, v{E+r}, v{X+r}")
        for r in range(8): a(f"v_exp_f32 v{E+r}, v{E+r}")
        for r in range(8): a(f"v_mul_f32 v{X+r}, s{28+(r&3)}, v{X+r}")
        for r in range(8): a(f"v_add_f32 v{E+r}, 1.0, v{E+r}")
        for r in range(8): a(f"v_rcp_f32 v{E+r}, v{E+r}")
        a("s_nop 0")
        for h in range(2):
            a(f"v_mul_f32 v{S+h}, v{X+4*h}, v{E+4*h}")
        for r in range(1, 4):
            for h in range(2):
                a(f"v_fma_f32 v{S+h}, v{X+4*h+r}, v{E+4*h+r}, v{S+h}")
        for h in range(2):
            a(f"buffer_store_dword v{S+h}, v{VPW}, s[12:15], s35 offen offset:{(tp*512+h*128) if PMAP else (2*tp+h)*256}{PSF}")
    fstamp(7)
    fstamp_out(VL16)
```

```python
import sys, os
from gen import Asm, kernel_header, kernel_desc, srd, build, f32bits, WS_BYTES
import gen2f as gen2
from gen2f import SLS, WS_W1R, WS_SCHED, WS_PART, WS_PNN, WS_TABR, WS_DBG, Cnt

B, F, D, V, H = 16384, 100, 128, 1000, 512
gen2.PMAP = True
gen2.PSF = os.environ.get("PSF", " sc1")
K1_LDS = 163840
ROWB = 144
SC = 147456
FLAG = 1018 * 144
R2 = SC - 24576
assert R2 + 23 * 1024 <= FLAG
R1 = R2
NR = 30
NTL = 6
NDA = int(os.environ.get("NDA", "30"))
NDM1 = int(os.environ.get("NDM1", "99"))
K1ABL = set(os.environ.get("K1ABL", "").split(","))
STAMP1 = False
SCHED = os.environ.get("SCHED", "mask")
STF = os.environ.get("STF", " sc1")
assert NR * 4 * 1008 <= R2 and (NR * 4 + 4 * NTL) * 7 >= 1001 and (NR * 4 + 4 * NTL) * 1008 <= FLAG

TILES = []
for c in range(4):
    for r in range(c + 1): TILES.append((r, c))
for r in range(4):
    for c in range(4, 7): TILES.append((r, c))
TILES += [(4, 4), (4, 5), (4, 6), (5, 5), (5, 6), (6, 6)]
NEED = {}; REL = {}
for t, (r, c) in enumerate(TILES):
    for k in (r, c):
        NEED.setdefault(k, t); REL[k] = t


def gen_k1(a, name):
    kernel_header(a, name)
    LANE = 255; L16 = 254; VF1 = 253; VFA = 252; VT = 251
    uid = [0]
    XST = os.environ.get("XST", "")
    def stamp(k):
        if XST and LANE == 8 and k in (3, 4, 5): fstamp({3: 4, 5: 6, 4: 7}[k], True)
    def fstamp(k, x=False):
        if not STAMP1: return
        if XST and not x and k in (4, 6, 7): return
        a("s_memtime s[94:95]")
        a("s_waitcnt lgkmcnt(0)")
        a(f"s_mov_b32 s{86+k}, s94")
    def fstamp_out(vl16):
        if not STAMP1: return
        a(f"""
        s_barrier
        s_lshl_b32 s94, s2, 3
        s_add_u32 s94, s94, s3
        s_lshl_b32 s94, s94, 11
        s_add_u32 s94, s94, {WS_DBG}
        v_lshlrev_b32 v1, 1, v{vl16}
        """)
        for k in range(8):
            a(f"v_mov_b32 v0, s{86+k}")
            a(f"buffer_store_dword v0, v1, s[12:15], s94 offen offset:{4*k}")
    def signal(j):
        a(f"""
        s_mov_b64 exec, 1
        ds_add_u32 v{VFA}, v{VF1} offset:{4*j}
        s_mov_b64 exec, -1
        """)
    def waitflag(j, n):
        uid[0] += 1
        a.label(f"{name}_wf{uid[0]}")
        a(f"""
        ds_read_b32 v{VT}, v{VFA} offset:{4*j}
        s_waitcnt lgkmcnt(0)
        v_readfirstlane_b32 s45, v{VT}
        s_cmp_lt_u32 s45, {n}
        s_cbranch_scc1 {name}_wf{uid[0]}
        """)
    CPF = ""
    if os.environ.get("CPF", "1") == "1":
        CPF = f"""
        s_getpc_b64 s[46:47]
        {name}_pc:
        v_lshlrev_b32 v2, 7, v0
        v_min_u32 v2, k3_kernel_end-{name}_pc, v2
        v_mov_b32 v3, s47
        v_add_co_u32 v2, vcc, s46, v2
        v_addc_co_u32 v3, vcc, 0, v3, vcc
        global_load_dword v250, v[2:3], off
        """
    a(f"""
    s_cmp_ge_u32 s2, 256
    s_cbranch_scc1 {name}_end
    s_load_dwordx8 s[4:11], s[0:1], 0
    s_load_dwordx2 s[12:13], s[0:1], 72
    s_load_dwordx2 s[52:53], s[0:1], 64
    {CPF}
    v_lshrrev_b32 v1, 6, v0
    v_and_b32 v{LANE}, 63, v0
    s_bfe_u32 s36, s2, 0x10003
    v_readfirstlane_b32 s3, v1
    s_lshr_b32 s37, s2, 4
    s_lshl_b32 s37, s37, 3
    s_and_b32 s38, s2, 7
    s_or_b32 s37, s37, s38
    v_lshlrev_b32 v{L16}, 4, v{LANE}
    v_mov_b32 v{VFA}, {FLAG}
    v_mov_b32 v{VF1}, 1
    v_mov_b32 v40, {1000 | (1000 << 16)}
    v_cmp_gt_u32 vcc, 8, v0
    v_lshl_add_u32 v41, v0, 2, v{VFA}
    v_cndmask_b32 v40, v40, 0, vcc
    v_cmp_gt_u32 vcc, 12, v0
    s_and_saveexec_b64 s[46:47], vcc
    ds_write_b32 v41, v40
    s_mov_b64 exec, s[46:47]
    v_mul_u32_u24 v6, 57, v{LANE}
    v_lshrrev_b32 v6, 9, v6
    v_mul_u32_u24 v5, 9, v6
    v_sub_u32 v5, v{LANE}, v5
    v_cmp_gt_u32 s[40:41], 8, v5
    v_lshlrev_b32 v5, 4, v5
    v_lshl_add_u32 v83, v6, 8, v5
    s_and_b32 s56, s3, 3
    s_mul_i32 s42, s56, {7*256}
    s_mul_i32 s43, s56, 1008
    s_lshl_b32 s38, s36, 7
    s_add_u32 s42, s42, s38
    s_bitset0_b32 s41, 31
    s_waitcnt lgkmcnt(0)
    s_barrier
    """)
    srd(a, 16, 4, B * F * 4)
    srd(a, 20, 6, V * D * 2)
    srd(a, 24, 8, F * F * 2)
    srd(a, 28, 10, F * D * H * 2)
    srd(a, 32, 12, WS_BYTES)
    srd(a, 12, 12, WS_BYTES)
    srd(a, 52, 52, 256)
    a("s_mov_b32 s50, s36")
    fstamp(0)
    def dma(first, n):
        if n <= 0: return
        a(f"""
        s_lshr_b32 s38, s2, 3
        s_mul_i32 s38, s38, {n}
        s_lshr_b32 s38, s38, 5
        s_add_u32 s38, s38, {first}
        """)
        for c in range(n):
            a(f"""
            s_mul_i32 s44, s38, {4*1008}
            s_mul_i32 s39, s38, {4*7*256}
            s_add_u32 m0, s44, s43
            s_add_u32 s39, s39, s42
            s_add_u32 s38, s38, 1
            buffer_load_dwordx4 v83, s[20:23], s39 offen lds
            s_cmp_eq_u32 s38, {first+n}
            s_cselect_b32 s38, {first}, s38
            """)
    a(f"""
    s_cmp_ge_u32 s3, 4
    s_cbranch_scc1 {name}_aux
    """)
    W = 0; FR = 96; TA = 212; IDQ = 240; S0 = 244; S1 = 245; R = 246; RES = 247; KG = 248; VSL = 249
    RAW = 168; TB = FR; PX = 200; PY = 201; PW = 202; VSW = 203; VIO = 204; VTW = 206; C1K = 207; VDM = 208
    NTA = 7
    OFFJ = [0, 7, 13, 19]
    WL = [(t, j) for t, (m1, m2) in enumerate(TILES) if m2 != 6 for j in range(4)] + [(t, 0) for t, (m1, m2) in enumerate(TILES) if m2 == 6]
    WREG = {x: W + i for i, x in enumerate(WL)}
    NWQ = 23
    def AB(t):
        m1, m2 = TILES[t]
        return (6, m1) if m2 == 6 else (m1, m2)
    a(f"""
    s_setprio {os.environ.get("MP0", "3")}
    s_lshl_b32 s38, s3, 10
    s_add_u32 m0, s38, {R1}
    v_and_b32 v5, 15, v{LANE}
    """)
    for c in range(5):
        a(f"buffer_load_dwordx4 v{L16}, s[24:27], s38 offen lds")
        a(f"s_add_u32 m0, m0, 4096")
        a(f"s_add_u32 s38, s38, 4096")
    a(f"""
    v_lshrrev_b32 v6, 4, v{LANE}
    v_add_u32 v7, 3, v5
    v_lshrrev_b32 v7, 2, v7
    v_mad_u32_u24 v7, v5, 6, v7
    v_lshlrev_b32 v{VIO}, 2, v7
    s_movk_i32 s45, 400
    v_mad_u32_u24 v{VIO}, v6, s45, v{VIO}
    s_lshl_b32 s72, s37, 7
    s_lshl_b32 s73, s3, 5
    s_add_u32 s72, s72, s73
    s_mul_i32 s74, s72, 400
    s_mul_i32 s45, s36, 6400
    s_add_u32 s74, s74, s45
    """)
    NE = int(os.environ.get("NE", "4"))
    def rawload(ts=range(4)):
        for t in ts:
            a(f"buffer_load_dwordx4 v[{RAW+8*t}:{RAW+8*t+3}], v{VIO}, s[16:19], s74 offen")
            a(f"buffer_load_dwordx3 v[{RAW+8*t+4}:{RAW+8*t+6}], v{VIO}, s[16:19], s74 offen offset:16")
            a("s_add_u32 s74, s74, 1600")
    def pack(ts=range(4)):
        for t in ts:
            b = RAW + 8 * t
            a(f"v_lshl_or_b32 v{b}, v{b+1}, 16, v{b}")
            a(f"v_lshl_or_b32 v{b+1}, v{b+3}, 16, v{b+2}")
            a(f"v_lshl_or_b32 v{b+2}, v{b+5}, 16, v{b+4}")
            a(f"v_cndmask_b32 v{b+3}, v{C1K}, v{b+6}, s[48:49]")
    def padwrite(ts=range(4)):
        for t in ts:
            a(f"ds_write_b128 v{VSW}, v[{RAW+8*t}:{RAW+8*t+3}] offset:{t*64*ROWB}")
    rawload(range(NE))
    nm = NR - NDA; nm1 = min(nm, NDM1)
    a("s_mov_b64 exec, s[40:41]")
    dma(NDA, nm1)
    def tail_loads():
        a(f"s_add_u32 s39, s42, {NR*4*7*256}")
        for c in range(NTL):
            a(f"buffer_load_dwordx4 v[{TB+4*c}:{TB+4*c+3}], v83, s[20:23], s39 offen")
            a(f"s_add_u32 s39, s39, {4*7*256}")
    nafter = 2 * NE + nm1
    if nm1 == nm:
        tail_loads(); nafter += NTL
    a(f"""
    s_mov_b64 exec, -1
    v_and_b32 v8, 3, v{LANE}
    v_cmp_eq_u32 s[48:49], 0, v8
    v_mul_u32_u24 v{PX}, {25*100*2}, v6
    v_mul_u32_u24 v{PY}, 50, v6
    v_lshl_add_u32 v{PX}, v7, 1, v{PX}
    s_movk_i32 s45, 200
    v_mad_u32_u24 v{PY}, v7, s45, v{PY}
    v_add_u32 v{PX}, {R1}, v{PX}
    v_add_u32 v{PY}, {R1}, v{PY}
    v_add_u32 v{PW}, {R2}, v{L16}
    v_and_b32 v{KG}, 48, v{LANE}
    s_mul_i32 s45, s3, {256*ROWB}
    s_add_u32 s45, s45, 128
    v_mul_u32_u24 v{VSL}, {ROWB}, v5
    v_add_u32 v{VSL}, s45, v{VSL}
    v_mul_u32_u24 v{VSW}, {ROWB}, v{LANE}
    v_add_u32 v{VSW}, s45, v{VSW}
    v_mov_b32 v{RES}, 0
    v_mov_b32 v{VDM}, v83
    s_add_u32 s45, s43, {NR*4*1008}
    v_add_u32 v{VTW}, s45, v{L16}
    v_mov_b32 v{C1K}, 1000
    s_movk_i32 s57, {ROWB}
    """)
    for i in range(48): a(f"v_mov_b32 v{W+i}, 0")
    if os.environ.get("MPW"): a(f"s_setprio {os.environ.get('MPW')}")
    a(f"s_waitcnt vmcnt({nafter})")
    signal(0)
    waitflag(0, 4)
    stamp(2)
    for w in range(3):
        a(f"s_cmp_eq_u32 s3, {w+1}")
        a(f"s_cbranch_scc1 {name}_wb{w+1}")
    X = W; Y = W + 24
    for w in range(4):
        a.label(f"{name}_wb{w}")
        wl = WL[24 * w:24 * w + 24]
        for c, (t, j) in enumerate(wl):
            m1, m2 = AB(t)
            a(f"ds_read_u16_d16_hi v{X+c}, v{PX} offset:{((OFFJ[j]+m1)*100+m2)*2}")
            if m1 != m2:
                a(f"ds_read_u16_d16_hi v{Y+c}, v{PY} offset:{(m2*100+OFFJ[j]+m1)*2}")
        a("s_waitcnt lgkmcnt(0)")
        signal(1)
        for c, (t, j) in enumerate(wl):
            m1, m2 = AB(t)
            if m1 != m2: a(f"v_add_f32 v{X+c}, v{X+c}, v{Y+c}")
            if m2 == 6: a(f"v_cndmask_b32 v{X+c}, 0, v{X+c}, s[48:49]")
        if w < 3: a(f"s_branch {name}_wbd")
    a.label(f"{name}_wbd")
    a(f"""
    s_mul_i32 s45, s3, 6144
    v_add_u32 v{PX}, s45, v{PW}
    """)
    waitflag(1, 4)
    for c in range(6):
        if c == 5:
            a("s_cmp_eq_u32 s3, 3")
            a(f"s_cbranch_scc1 {name}_wsk")
        a(f"ds_write_b128 v{PX}, v[{X+4*c}:{X+4*c+3}] offset:{c*1024}")
    a.label(f"{name}_wsk")
    signal(2)
    if nm1 < nm:
        a("s_mov_b64 exec, s[40:41]")
        a(f"v_mov_b32 v83, v{VDM}")
        dma(NDA + nm1, nm - nm1)
        tail_loads()
        a("s_mov_b64 exec, -1")
    waitflag(2, 4)
    stamp(3)
    for t in range(NWQ):
        a(f"ds_read_b128 v[{W+4*t}:{W+4*t+3}], v{PW} offset:{t*1024}")
    a(f"s_waitcnt vmcnt({nm + NTL})")
    pack(range(NE))
    a("s_waitcnt lgkmcnt(0)")
    signal(3)
    waitflag(3, 4)
    padwrite(range(NE))
    a("s_mov_b64 exec, s[40:41]")
    for c in range(NTL):
        a(f"s_waitcnt vmcnt({NTL-1-c})")
        a(f"ds_write_b128 v{VTW}, v[{TB+4*c}:{TB+4*c+3}] offset:{c*4*1008}")
    a("s_mov_b64 exec, -1")
    fstamp(5)
    signal(4)
    rawload(range(NE, 4))
    if os.environ.get("MPX"): a(f"s_setprio {os.environ.get('MPX')}")
    def quad(k, ks): return FR + 8 * k + 4 * ks
    def madL(k): return f"v_mad_u32_u16 v{quad(k,1)}, v{IDQ+(k>>1)}, s57, v{KG} op_sel:[{k&1},0,0,0]"
    def rdL(k, ks): return f"ds_read_b128 v[{quad(k,ks)}:{quad(k,ks)+3}], v{quad(k,1)} offset:{64*ks}"
    idq = [f"ds_read_b128 v[{IDQ}:{IDQ+3}], v{VSL}", f"v_add_u32 v{VSL}, {16*ROWB}, v{VSL}"]
    red = [f"v_add_f32 v{R}, v{S0}, v{S1}",
           f"v_add_f32_dpp v{R}, v{R}, v{R} row_shr:1 row_mask:0xf bank_mask:0xf bound_ctrl:0",
           f"v_add_f32_dpp v{R}, v{R}, v{R} row_shr:2 row_mask:0xf bank_mask:0xf bound_ctrl:0",
           f"v_add_f32_dpp v{R}, v{R}, v{R} row_shr:4 row_mask:0xf bank_mask:0xf bound_ctrl:0",
           f"v_add_f32_dpp v{R}, v{R}, v{R} row_shr:8 row_mask:0xf bank_mask:0xf bound_ctrl:0",
           f"v_add_f32_dpp v{R}, v{R}, v{R} row_bcast:15 row_mask:0xa bank_mask:0xf",
           f"v_add_f32_dpp v{R}, v{R}, v{R} row_bcast:31 row_mask:0xc bank_mask:0xf",
           f"v_readlane_b32 s76, v{R}, 63",
           f"v_writelane_b32 v{RES}, s76, m0",
           "s_add_u32 m0, m0, 1"]
    NP = 56
    FL = sorted(WL)
    def F_(i):
        t, j = FL[i]
        tb = TA + 4 * (t % NTA)
        s = S0 if i % 2 == 0 else S1
        return f"v_{'mul' if i < 2 else 'fmac'}_f32 v{s}, v{tb+j}, v{WREG[(t,j)]}"
    def M_(t, ks):
        m1, m2 = AB(t)
        tb = TA + 4 * (t % NTA)
        c = "0" if ks == 0 else f"v[{tb}:{tb+3}]"
        return f"v_mfma_f32_16x16x32_bf16 v[{tb}:{tb+3}], v[{quad(m1,ks)}:{quad(m1,ks)+3}], v[{quad(m2,ks)}:{quad(m2,ks)+3}], {c}"
    def plan(P0, extra3):
        occ = {p: [] for p in range(NP)}; post = {p: [] for p in range(NP)}
        cnt = lambda p: len(occ[p % NP]) + len(post[p % NP]) + (2 if p % NP == NP - 1 else 0)
        late = []
        for k in range(7):
            p = 2 * REL[k] + 1
            if k == 6: p = NP
            ch = [(madL(k), None, None)] + ([(idq[0], "lgkm", None)] if k == 6 else []) + [(rdL(k, 0), "lgkm", None), (rdL(k, 1), "lgkm", ("L", k))]
            if k == 5: ch.append(("W", "lgkm", ("L", 2)))
            if k == 6: ch.append(("W", "lgkm", ("L", 3)))
            post[p % NP] += ch
            if p >= NP: late += [x[0] for x in ch]
        occ[3].append((idq[1], None, None)); late.append(idq[1])
        post[2 * NEED[4] - 1].append(("W", "lgkm", ("L", 6)))
        p = P0 + 1
        for l in red[1:]:
            while cnt(p) >= 2: p += 1
            occ[p].append((l, None, None)); p += 2
        cap = lambda p: 3 if (p % NP) in extra3 else 2
        p = P0; tailF = []
        for i in range(len(FL) + 1):
            t = FL[i][0] if i < len(FL) else 27
            p = max(p, 2 * t + 4)
            while cnt(p) >= cap(p) and p < 2 * NP: p += 1
            if p >= NP + P0 or p >= 2 * (t + NTA): return None
            txt = F_(i) if i < len(FL) else red[0]
            occ[p % NP].append((txt, None, None))
            if p >= NP: tailF.append(txt)
        return occ, post, late, tailF
    best = None
    for P0 in range(4, 10):
        for n3 in range(0, 40):
            for ph in range(3):
                ex = set((ph + (i * NP) // max(n3, 1)) % NP for i in range(n3))
                r = plan(P0, ex)
                if r is None: continue
                cost = sum(max(16, 8 + 4 * (len(r[0][p]) + len(r[1][p]) + (2 if p == NP - 1 else 0))) for p in range(NP))
                if best is None or cost < best[0]: best = (cost, P0, n3, ph, r)
    print("pnn plan", best[:4], file=sys.stderr)
    occ, post, late, tailF = best[4]
    cn = {"lgkm": Cnt()}
    def body(emit, pro=False):
        ws = []
        for p in range(NP):
            t, q = divmod(p, 2)
            if pro and t < 12: continue
            if emit and not pro: a(M_(t, q))
            for it in occ[p] + post[p]:
                if it[0] == "W":
                    n = cn[it[1]].after(it[2]); ws.append(n)
                    if emit: a(f"s_waitcnt {it[1]}cnt({n})")
                else:
                    if pro and not (it[0].startswith("ds_") or it[0].startswith("v_mad") or it[0] == idq[1]): continue
                    if emit: a(it[0])
                    if it[1]: cn[it[1]].issue(it[2])
        return ws
    for l in idq: a(l)
    a("s_mov_b32 m0, 0")
    waitflag(4, 8 if NDA else 4)
    fstamp(1)
    a(f"s_setprio {os.environ.get('MP1', '0')}")
    body(True, True)
    w0 = body(False); w1 = body(False); assert w0 == w1, (w0, w1)
    MID = 15 if idq[0] in late else 14
    MIDADJ = 16 if (idq[0] in late) == (idq[1] in late) else 17
    a(f"s_movk_i32 s58, {os.environ.get('RAWM', '1') if NE == 4 else MID - 16 + 4 * NE}")
    a.label(f"{name}_loop")
    body(True)
    a(f"""
    s_cmp_lt_u32 m0, s58
    s_cbranch_scc1 {name}_loop
    s_cmp_lt_u32 m0, 32
    s_cbranch_scc1 {name}_mid
    """)
    a("s_nop 7")
    for l in tailF: a(l)
    a("s_nop 1")
    for l in red[1:]:
        a(l); a("s_nop 1")
    a(f"""
    v_add_u32 v40, -1, v{LANE}
    v_cmp_gt_u32 vcc, 32, v40
    s_lshl_b32 s74, s72, 2
    s_lshl_b32 s76, s36, 16
    s_add_u32 s74, s74, s76
    s_add_u32 s74, s74, {WS_PNN}
    v_lshlrev_b32 v40, 2, v40
    s_lshl_b32 s76, s36, 6
    v_xor_b32 v40, s76, v40
    s_and_saveexec_b64 s[46:47], vcc
    buffer_store_dword v{RES}, v40, s[32:35], s74 offen
    s_mov_b64 exec, s[46:47]
    """)
    fstamp(2)
    fstamp(3)
    a(f"s_branch {name}_k2")
    RAW2 = int(os.environ.get("RAW2", "0"))
    SPL = NE < 4 and RAW2 > MID - 16 + 4 * NE
    a.label(f"{name}_mida")
    if SPL:
        a(f"s_waitcnt vmcnt(0)\ns_movk_i32 s58, {RAW2}")
        pack(range(NE, 4)); padwrite(range(NE, 4))
        a(f"s_branch {name}_loop")
    a.label(f"{name}_mid")
    a(f"""
    s_cmp_eq_u32 m0, {MID}
    s_cbranch_scc1 {name}_mid2
    s_cmp_eq_u32 m0, {MID - 16 + 4 * NE if SPL else 99}
    s_cbranch_scc1 {name}_mida
    s_movk_i32 s58, {MID}
    s_mul_i32 s45, s36, 12800
    s_sub_u32 s74, s74, s45
    """)
    if NE < 4 and not SPL:
        a("s_waitcnt vmcnt(0)")
        pack(range(NE, 4)); padwrite(range(NE, 4))
    rawload()
    a(f"s_branch {name}_loop")
    a.label(f"{name}_mid2")
    a("s_waitcnt vmcnt(0)")
    a("s_movk_i32 s58, 32")
    pack()
    a(f"v_subrev_u32 v{VSL}, {16*16*ROWB}, v{VSL}")
    padwrite()
    a(f"s_branch {name}_loop")
    a.label(f"{name}_aux")
    a(f"""
    s_setprio {os.environ.get("AUXPRIO", "0")}
    v_mov_b32 v8, v{LANE}
    v_mov_b32 v9, v{L16}
    v_mov_b32 v10, v{VF1}
    v_mov_b32 v11, v{VFA}
    s_mov_b32 s51, s2
    s_mov_b32 s64, 0
    s_mov_b32 s65, 0
    """)
    LANE = 8; L16 = 9; VF1 = 10; VFA = 11; VT = 12; ZERO = 13; VST = 14; VRD = 15; ONE = VF1; VPF = 7
    E = 40; VSO = 30; LB = 31; SELQ = 0; OHQ = 16; OWQ = 23; LU0 = 54; LU1 = 55
    PK = 64; PM = 71; T0 = 72; T1 = 73; BK = 74; FM = 76; OP = 78; OUT = 80; HD = 84; CB = 85; OWN = 86; RK = 87
    CT = 116; T2 = 117; T3 = 118; AL = 119; FA = 120; TA_ = 121; TB_ = 122; G32 = 123; CH = T3
    K0 = 32; K1 = 33; VW = 34; VWR = 36
    DR = 128; PO = 192; RD = 224; RW = 224
    MT = [32 + 4 * q for q in range(8)] + [88 + 4 * q for q in range(7)] + [124]
    VDA = 35
    a(f"""
    v_mov_b32 v{VDA}, v83
    s_lshr_b32 s72, s2, 3
    s_mul_i32 s72, s72, {NDA}
    s_lshr_b32 s72, s72, 5
    """)
    nd = [0]
    def nvm(): return sum(1 for l in a.lines if l.strip().startswith("buffer_"))
    lastd = [None]
    def adma(n, restore="-1"):
        n = min(n, NDA - nd[0])
        if n <= 0: return False
        a("s_mov_b64 exec, s[40:41]")
        for c in range(n):
            a(f"""
            s_mul_i32 s73, s72, {4*1008}
            s_mul_i32 s74, s72, {4*7*256}
            s_add_u32 m0, s73, s43
            s_add_u32 s74, s74, s42
            s_add_u32 s72, s72, 1
            buffer_load_dwordx4 v{VDA}, s[20:23], s74 offen lds
            s_cmp_eq_u32 s72, {NDA}
            s_cselect_b32 s72, 0, s72
            """)
        a(f"s_mov_b64 exec, {restore}")
        nd[0] += n
        lastd[0] = nvm()
        return True
    DB0 = int(os.environ.get("DB0", "30")); DBE = int(os.environ.get("DBE", "1")); DPR = [int(x) for x in os.environ.get("DPR", "2").split(",")]
    DLAG = int(os.environ.get("DLAG", "1"))
    RLMAP = """
    s_lshl_b32 s57, s51, 2
    s_add_u32 s57, s57, s56
    """
    if os.environ.get("RLM", "1") == "1":
        RLMAP = """
        s_lshr_b32 s38, s51, 4
        s_and_b32 s39, s51, 7
        s_sub_u32 s57, 2, s36
        s_lshl_b32 s57, s39, s57
        s_lshl_b32 s37, s36, 5
        s_add_u32 s57, s57, s37
        s_add_u32 s57, s57, s56
        s_mul_i32 s37, s38, 48
        s_add_u32 s37, s37, s57
        s_lshl_b32 s38, s38, 1
        s_lshr_b32 s39, s39, 2
        s_add_u32 s38, s38, s39
        s_add_u32 s38, s38, 768
        s_and_b32 s57, s57, 7
        s_cmp_eq_u32 s57, 2
        s_cselect_b32 s38, s38, 1000
        s_lshl_b32 s39, s36, 1
        s_and_b32 s39, s39, s56
        s_cselect_b32 s57, s38, s37
        """
    a.label(f"{name}_unit")
    a(f"""
    s_bfe_u32 s36, s51, 0x10003
    {RLMAP}
    s_lshr_b32 s37, s51, 4
    s_lshl_b32 s37, s37, 3
    s_and_b32 s38, s51, 7
    s_or_b32 s37, s37, s38
    s_and_b32 s58, s56, 1
    s_lshl_b32 s59, s37, 1
    s_add_u32 s58, s58, s59
    s_lshr_b32 s59, s56, 1
    s_lshl_b32 s60, s36, 1
    s_add_u32 s59, s59, s60
    s_mul_i32 s60, s58, 25600
    s_mul_i32 s61, s59, 96
    s_add_u32 s60, s60, s61
    s_movk_i32 s61, 400
    v_lshrrev_b32 v1, 3, v{LANE}
    v_and_b32 v2, 7, v{LANE}
    v_mul_u32_u24 v0, s61, v1
    v_cmp_gt_u32 s[48:49], 7, v2
    v_lshl_add_u32 v0, v2, 4, v0
    v_and_b32 v5, 15, v{LANE}
    v_and_b32 v6, 48, v{LANE}
    v_lshl_add_u32 v{VPF}, v5, 8, v6
    s_lshl_b32 s44, s56, 15
    s_xor_b32 s38, s50, 1
    s_lshl_b32 s38, s38, 7
    s_add_u32 s44, s44, s38
    """)
    IDXP = int(os.environ.get("IDXP", "30"))
    adma(IDXP)
    a("s_mov_b64 exec, s[48:49]")
    for i in range(8):
        a(f"buffer_load_dwordx4 v[{RW+4*i}:{RW+4*i+3}], v0, s[16:19], s60 offen")
        a(f"s_add_u32 s60, s60, 3200")
    a("s_mov_b64 exec, -1")
    idx0 = nvm() - 8
    adma(DB0 - IDXP)
    a(f"""
    s_lshr_b32 s78, s57, 5
    s_bfe_u32 s79, s57, 0x20003
    s_bfe_u32 s80, s57, 0x20001
    s_and_b32 s81, s57, 1
    s_lshl_b32 s77, s78, 2
    s_lshl_b32 s83, s81, 1
    s_add_u32 s77, s77, s83
    s_lshl_b32 s77, s77, 7
    s_lshl_b32 s83, s79, 5
    s_add_u32 s77, s77, s83
    s_lshl_b32 s83, s80, 3
    s_add_u32 s77, s77, s83
    s_lshl_b32 s77, s77, 10
    s_lshl_b32 s82, s78, 12
    s_lshl_b32 s83, s79, 10
    s_add_u32 s82, s82, s83
    s_lshl_b32 s83, s80, 8
    s_add_u32 s82, s82, s83
    s_lshl_b32 s83, s81, 7
    s_add_u32 s82, s82, s83
    s_mov_b32 s84, {2*SLS}
    v_lshrrev_b32 v3, 2, v{LANE}
    v_and_b32 v4, 3, v{LANE}
    v_mul_lo_u32 v{VST}, v3, s84
    v_lshl_add_u32 v{VST}, v4, 4, v{VST}
    s_lshl_b32 s61, s56, 12
    s_add_u32 s61, s61, {SC}
    v_and_b32 v3, 3, v3
    v_lshlrev_b32 v{VWR}, 6, v{LANE}
    v_lshl_add_u32 v{VWR}, v3, 4, v{VWR}
    v_add_u32 v{VWR}, s61, v{VWR}
    v_xor_b32 v{VWR+1}, 16, v{VWR}
    v_xor_b32 v{VWR+2}, 32, v{VWR}
    v_xor_b32 v{VWR+3}, 48, v{VWR}
    v_and_b32 v3, 48, v{LANE}
    v_xor_b32 v{VRD}, v3, v{L16}
    v_add_u32 v{VRD}, s61, v{VRD}
    s_mov_b32 s84, 0x05040100
    s_mov_b32 s85, 0x07060302
    s_cmp_eq_u32 s64, 0
    s_cbranch_scc1 {name}_nsig0
    s_waitcnt vmcnt(0)
    """)
    a.label(f"{name}_nsig0")
    def dsignal():
        a(f"""
        s_waitcnt vmcnt({nvm() - lastd[0]})
        s_cmp_lg_u32 s64, 0
        s_cbranch_scc1 {name}_nsig
        """)
        signal(4)
        a.label(f"{name}_nsig")
        fstamp(5)
        a(f"s_setprio {os.environ.get('AP0', '1')}")
    dsig = [False]
    if nd[0] == NDA: dsignal(); dsig[0] = True
    if os.environ.get("SKIPWG", ""):
        a(f"""
        s_cmp_eq_u32 s64, 0
        s_cselect_b32 s45, s2, 1000
        s_and_b32 s45, s45, 31
        s_cmp_eq_u32 s45, 5
        s_cselect_b32 s34, 0, s14
        """)
    rl_loads = []
    for h in range(2):
        for j in range(8):
            u = [f"buffer_load_dwordx4 v[{DR+32*h+4*j}:{DR+32*h+4*j+3}], v{L16}, s[28:31], s77 offen offset:{(j&3)*1024}"]
            if j == 3: u.append("s_add_u32 s77, s77, 4096")
            if j == 7 and h == 0: u.append(f"s_add_u32 s77, s77, {128*1024-4096}")
            rl_loads.append(u)
    rl_units = []; pf_early = []
    for o in range(2):
        for i in range(8):
            for ks in range(2):
                d = MT[2 * i + ks] if o == 0 else 128 + 16 * i + 8 + 4 * ks
                u = [f"s_add_u32 s47, s44, {o*131072 + i*4096}"] if ks == 0 else []
                u += [f"buffer_load_dwordx4 v[{d}:{d+3}], v{VPF}, s[20:23], s47 offen offset:{64*ks}"]
                (pf_early if (o == 0 and i >= 3) else rl_units).append(u)
    a(f"""
    s_lshl_b32 s61, s56, 12
    s_add_u32 s61, s61, {SC}
    v_lshlrev_b32 v{OWN}, 2, v{LANE}
    v_add_u32 v{OWN}, s61, v{OWN}
    v_and_b32 v{CB}, 0xffffff80, v{OWN}
    v_and_b32 v{G32}, 32, v{LANE}
    s_add_u32 s61, s61, 256
    v_mul_u32_u24 v{LB}, 56, v{LANE}
    v_add_u32 v{LB}, s61, v{LB}
    v_mul_u32_u24 v{VW}, 56, v1
    v_lshl_add_u32 v{VW}, v2, 3, v{VW}
    v_add_u32 v{VW}, s61, v{VW}
    v_add_u32 v2, s59, v2
    v_subrev_u32 v3, 5, v2
    v_min_u32 v2, v2, v3
    v_mov_b32 v{ZERO}, 0
    v_mul_u32_u24 v2, 0x10001, v2
    v_lshlrev_b32 v2, 12, v2
    v_add_u32 v{K0}, {1024 << 16}, v2
    v_add_u32 v{K1}, {2048 | (3072 << 16)}, v2
    v_mov_b32 v{PM}, 0xf00
    s_lshr_b32 s62, s58, 7
    s_mul_i32 s62, s62, 25
    s_mul_i32 s63, s59, 6
    s_add_u32 s62, s62, s63
    s_lshl_b32 s62, s62, 3
    s_bfe_u32 s63, s58, 0x30004
    s_add_u32 s62, s62, s63
    s_lshl_b32 s62, s62, 13
    s_bfe_u32 s63, s58, 0x30001
    s_lshl_b32 s63, s63, 10
    s_add_u32 s62, s62, s63
    s_and_b32 s63, s58, 1
    s_lshl_b32 s63, s63, 9
    s_add_u32 s62, s62, s63
    s_add_u32 s62, s62, {WS_SCHED}
    v_and_b32 v{VSO}, 31, v{LANE}
    v_lshrrev_b32 v3, 5, v{LANE}
    v_lshlrev_b32 v{VSO}, 4, v{VSO}
    v_lshl_add_u32 v{VSO}, v3, 3, v{VSO}
    s_cmp_eq_u32 s59, 3
    s_cselect_b32 s63, 0xf00, 0
    s_movk_i32 s66, 0x7c
    s_mov_b32 s67, 0x001f001f
    s_mov_b32 s75, 0x06040200
    v_mov_b32 v{LU0}, 0x08040201
    v_mov_b32 v{LU1}, 0x80402010
    s_mov_b64 exec, s[48:49]
    """)
    assert SC % 128 == 0 and 3840 % 128 == 0
    for i in range(8):
        b = RW + 4 * i
        a(f"""
        s_waitcnt vmcnt({nvm() - idx0 - i - 1})
        v_lshl_or_b32 v{b}, v{b+1}, 16, v{b}
        v_lshl_or_b32 v{b+1}, v{b+3}, 16, v{b+2}
        v_add_u32 v{b}, v{K0}, v{b}
        v_add_u32 v{b+1}, v{K1}, v{b+1}
        ds_write_b64 v{VW}, v[{b}:{b+1}] offset:{i*8*56}
        """)
        adma(DBE, "s[48:49]")
    a("s_mov_b64 exec, -1")
    for k in range(7):
        a(f"ds_read_b64 v[{E+2*k}:{E+2*k+1}], v{LB} offset:{8*k}")
    for k in range(7):
        a(f"""
        s_waitcnt lgkmcnt({6-k})
        v_and_b32 v{T0}, s67, v{E+2*k}
        v_and_b32 v{T1}, s67, v{E+2*k+1}
        v_lshl_or_b32 v{T0}, v{T1}, 10, v{T0}
        v_lshlrev_b32_sdwa v{T1}, 5, v{T0} dst_sel:DWORD dst_unused:UNUSED_PAD src0_sel:DWORD src1_sel:WORD_1
        v_or_b32_sdwa v{PK+k}, v{T1}, v{T0} dst_sel:DWORD dst_unused:UNUSED_PAD src0_sel:DWORD src1_sel:WORD_0
        v_perm_b32 v{T0}, v{E+2*k+1}, v{E+2*k}, s75
        v_lshrrev_b32 v{T1}, 3, v{T0}
        v_and_b32 v{T0}, 0x07070707, v{T0}
        v_and_b32 v{SELQ+k}, 0x03030303, v{T1}
        v_perm_b32 v{OHQ+k}, v{LU1}, v{LU0}, v{T0}
        v_add_u32 v{OWQ+k}, v{LU0}, v{OHQ+k}
        """)
    stamp(3)
    def relayout():
        a(f"""
        s_cmp_ge_u32 s57, 800
        s_cbranch_scc1 {name}_norl
        s_waitcnt vmcnt(0)
        """)
        stamp(5)
        def rl_store(u):
            sh, h = divmod(u, 2)
            for r in range(4):
                a(f"s_add_u32 s83, s82, {16*r*2*SLS + sh*SLS + h*64}")
                a(f"buffer_store_dwordx4 v[{RD+16*(u&1)+4*r}:{RD+16*(u&1)+4*r+3}], v{VST}, s[32:35], s83 offen{STF}")
        for u in range(4):
            sh, h = divmod(u, 2)
            for c in range(4):
                col = 4 * sh + c; d = col >> 1
                o = PO + 16 * (u & 1) + 4 * c
                for jj in range(4):
                    a(f"v_perm_b32 v{o+jj}, v{DR+32*h+8*jj+4+d}, v{DR+32*h+8*jj+d}, s{84+(col&1)}")
            if u:
                a("s_waitcnt lgkmcnt(0)")
                rl_store(u - 1)
            for c in range(4):
                o = PO + 16 * (u & 1) + 4 * c
                a(f"ds_write_b128 v{VWR+c}, v[{o}:{o+3}]")
            for r in range(4):
                a(f"ds_read_b128 v[{RD+16*(u&1)+4*r}:{RD+16*(u&1)+4*r+3}], v{VRD} offset:{1024*r}")
        for k in range(7):
            a(f"ds_write_b64 v{LB}, v[{E+2*k}:{E+2*k+1}] offset:{8*k}")
        a("s_waitcnt lgkmcnt(7)")
        rl_store(3)
        a.label(f"{name}_norl")
        a.label(f"{name}_rld")
        a(f"ds_write_b32 v{OWN}, v{ZERO}")
        stamp(4)
    a(f"ds_write_b32 v{OWN}, v{ZERO}")
    if os.environ.get('AP1'): a(f"s_setprio {os.environ.get('AP1', '0')}")
    APZ = int(os.environ.get("APZ", "4"))
    S3Z = int(os.environ.get("S3Z", "10"))
    DSZ = int(os.environ.get("DSZ", "0"))
    def flush_out():
        a(f"v_lshl_or_b32 v{OP}, v{OUT+1}, 16, v{OUT}")
        a(f"v_lshl_or_b32 v{OP+1}, v{OUT+3}, 16, v{OUT+2}")
        a(f"buffer_store_dwordx2 v[{OP}:{OP+1}], v{VSO}, s[32:35], s62 offen{STF}")
        a(f"s_add_u32 s62, s62, 65536")
    RLL = int(os.environ.get("RLL", "1")); RLN = int(os.environ.get("RLN", "4"))
    RL0 = int(os.environ.get("RL0", "12")); RLU = int(os.environ.get("RLU", "4"))
    assert (24 - RL0) * RLU >= 22 and RLL + 16 // RLN <= RL0
    zl = -1
    PRI = os.environ.get("PRI", "1000000000000000000001111111")
    assert len(PRI) == 28
    PF0 = int(os.environ.get("PF0", "5")); PFN = int(os.environ.get("PFN", "2"))
    assert PF0 + 10 // PFN <= RL0 and PFN % 2 == 0 and RLU % 2 == 0
    curp = [os.environ.get('AP0', '1')]
    def setp(p):
        if p != curp[0]: a(f"s_setprio {p}"); curp[0] = p
    for k in range(7):
        a(f"v_lshrrev_b32 v{PM}, 4, v{PM}")
        if k < 5: a(f"v_or_b32 v{PM}, 0xf00, v{PM}")
        elif k == 5: a(f"v_or_b32 v{PM}, s63, v{PM}")
        a(f"v_lshlrev_b32 v{BK}, 22, v{PK+k}")
        if k > 0: a(f"v_lshl_or_b32 v{BK}, v{PK+k-1}, 2, v{BK}")
        a(f"v_lshrrev_b32 v{BK+1}, 10, v{PK+k}")
        if k < 6: a(f"v_lshl_or_b32 v{BK+1}, v{PK+k+1}, 10, v{BK+1}")
        for r in range(4):
            z = 4 * k + r
            if nd[0] == NDA and z == zl + DLAG and not dsig[0]: dsignal(); assert z <= RLL
            if z == RL0:
                setp(os.environ.get("RLP", "1"))
                relayout()
            setp(PRI[z])
            if SCHED == "att":
                a(f"""
                v_and_b32 v{T2}, 15, v{PM}
                v_bcnt_u32_b32 v{T3}, v{T2}, 0
                v_cmp_eq_u32 vcc, {4-r}, v{T3}
                """)
                fill = []
                if z >= RLL: fill += rl_loads[(z - RLL) * RLN:(z - RLL + 1) * RLN]
                if z >= RL0: fill += rl_units[(z - RL0) * RLU:(z - RL0 + 1) * RLU]
                for u in fill:
                    for l in u: a(l)
                if not fill: a("s_nop 1")
                a(f"v_cndmask_b32 v{AL}, v{PM}, v{T2}, vcc")
                a.label(f"{name}_att{z}")
                a(f"""
                v_ffbl_b32 v{CH}, v{AL}
                v_mul_u32_u24 v{T0}, 5, v{CH}
                v_lshrrev_b64 v[{T0}:{T1}], v{T0}, v[{BK}:{BK+1}]
                v_and_or_b32 v{T0}, v{T0}, s66, v{CB}
                ds_add_rtn_u32 v{RK}, v{T0}, v{ONE}
                v_add_u32 v{T3}, -1, v{AL}
                v_and_b32 v{AL}, v{AL}, v{T3}
                v_cmpx_ne_u32 vcc, 0, v{AL}
                s_waitcnt lgkmcnt(0)
                v_cmpx_lt_u32 vcc, 1, v{RK}
                s_cbranch_execnz {name}_att{z}
                s_mov_b64 exec, -1
                ds_write_b32 v{OWN}, v{ZERO}
                """)
                if r == 0 and k > 0: flush_out()
                a(f"""
                v_lshlrev_b32 v{T0}, v{CH}, v{ONE}
                v_lshl_add_u32 v{T1}, v{CH}, 1, v{LB}
                v_xor_b32 v{PM}, v{PM}, v{T0}
                """)
            else:
                pos = [p for p in range(12) if 0 <= k - 1 + (p >> 2) <= 6]
                a(f"""
                v_ffbl_b32 v{HD}, v{PM}
                v_mul_u32_u24 v{T0}, 5, v{HD}
                v_lshrrev_b64 v[{T0}:{T1}], v{T0}, v[{BK}:{BK+1}]
                v_and_or_b32 v{T0}, v{T0}, s66, v{CB}
                ds_add_rtn_u32 v{RK}, v{T0}, v{ONE}
                ds_wrxchg_rtn_b32 v{CT}, v{OWN}, v{ZERO}
                v_and_b32 v{T2}, 15, v{PM}
                v_bcnt_u32_b32 v{T3}, v{T2}, 0
                v_cmp_eq_u32 vcc, {4-r}, v{T3}
                """)
                fill = []
                if z == 1: fill += [["s_lshl_b32 s45, s2, 8", f"s_add_u32 s45, s45, {WS_TABR}", f"buffer_store_dword v{ZERO}, v{ZERO}, s[12:15], s45 offen sc1"]]
                if z >= RLL: fill += rl_loads[(z - RLL) * RLN:(z - RLL + 1) * RLN]
                if z >= PF0: fill += pf_early[(z - PF0) * PFN:(z - PF0 + 1) * PFN]
                if z >= RL0: fill += rl_units[(z - RL0) * RLU:(z - RL0 + 1) * RLU]
                for u in fill:
                    for l in u: a(l)
                if adma(DPR[min(z, len(DPR) - 1)]): zl = z
                elif not fill: a("s_nop 1")
                a(f"""
                v_cndmask_b32 v{AL}, v{PM}, v{T2}, vcc
                s_waitcnt lgkmcnt(0)
                v_cmp_gt_u32 s[68:69], 2, v{CT}
                v_cmp_gt_u32 s[70:71], 2, v{RK}
                """)
                if r == 0 and k > 0: flush_out()
                else: a("s_nop 0")
                a(f"v_lshrrev_b64 v[{FM}:{FM+1}], v{G32}, s[68:69]")
                qs = [q for q in (k + 1, k, k - 1) if 0 <= q <= 6]
                tm = [TA_, TB_, FM + 1]
                for i, q in enumerate(qs): a(f"v_perm_b32 v{tm[i]}, v{FM}, v{FM}, v{SELQ+q}")
                for i, q in enumerate(qs): a(f"v_and_b32 v{tm[i]}, v{tm[i]}, v{OHQ+q}")
                for i, q in enumerate(qs):
                    a(f"v_msad_u8 v{FA}, v{OWQ+q}, v{tm[i]}, {'0' if i == 0 else f'v{FA}'}")
                    if q != k - 1: a(f"v_lshlrev_b32 v{FA}, 4, v{FA}")
                a(f"""
                v_and_b32 v{FA}, v{FA}, v{AL}
                v_cmp_eq_u32 vcc, 0, v{FA}
                v_ffbl_b32 v{CH}, v{FA}
                s_or_b64 vcc, vcc, s[70:71]
                v_cndmask_b32 v{CH}, v{CH}, v{HD}, vcc
                v_lshlrev_b32 v{T0}, v{CH}, v{ONE}
                v_lshl_add_u32 v{T1}, v{CH}, 1, v{LB}
                v_xor_b32 v{PM}, v{PM}, v{T0}
                """)
            off = (k - 1) * 8
            if off < 0:
                a(f"v_subrev_u32 v{T1}, 8, v{T1}"); off = 0
            a(f"ds_read_u16 v{OUT+r}, v{T1} offset:{off}")
        if k == 5:
            a("s_cmp_lg_u32 s59, 3")
            a(f"s_cbranch_scc1 {name}_sdone")
    a.label(f"{name}_sdone")
    a("s_waitcnt lgkmcnt(0)")
    flush_out()
    a.label(f"{name}_udone")
    a("s_setprio 0")
    fstamp(1)
    SKIP = os.environ.get("SKIPWG", "")
    a(f"""
    s_waitcnt vmcnt(0)
    """)
    fstamp(2)
    a(f"""
    s_mov_b64 exec, 1
    ds_add_rtn_u32 v{VT}, v{VFA}, v{VF1} offset:20
    v_mov_b32 v0, s51
    s_waitcnt lgkmcnt(0)
    v_readfirstlane_b32 s45, v{VT}
    s_and_b32 s45, s45, 3
    s_cmp_eq_u32 s45, 3
    s_cbranch_scc0 {name}_wdec
    s_mov_b64 exec, 0xff
    s_lshr_b32 s38, s51, 5
    s_lshl_b32 s39, 1, s51
    {"s_cmp_eq_u32 s34, 0" if SKIP else ""}
    {"s_cselect_b32 s39, 0, s39" if SKIP else ""}
    v_cmp_eq_u32 vcc, s38, v{LANE}
    v_mov_b32 v2, s39
    v_lshlrev_b32 v0, 2, v{LANE}
    v_cndmask_b32 v2, 0, v2, vcc
    v_mov_b32 v1, v2
    buffer_atomic_or v1, v0, s[52:55], 0 offen sc0
    s_lshl_b32 s45, s2, 8
    s_add_u32 s45, s45, {WS_TABR}
    s_waitcnt vmcnt(0)
    v_or_b32 v1, v1, v2
    v_cmp_ne_u32 vcc, -1, v1
    s_cbranch_vccnz {name}_poll
    s_mov_b64 exec, -1
    v_lshlrev_b32 v0, 8, v{LANE}
    s_mov_b32 s38, {WS_TABR}
    """)
    for j in range(4):
        a(f"buffer_store_dword v{VF1}, v0, s[12:15], s38 offen sc1")
        if j < 3: a("s_add_u32 s38, s38, 16384")
    a(f"s_branch {name}_go")
    a.label(f"{name}_poll")
    a(f"""
    buffer_load_dword v1, v{ZERO}, s[12:15], s45 offen sc1
    s_add_u32 s65, s65, 1
    s_waitcnt vmcnt(0)
    v_cmp_eq_u32 vcc, 1, v1
    s_cbranch_vccnz {name}_go
    s_cmp_lt_u32 s65, {int(os.environ.get("PLIM", "200"))}
    s_cbranch_scc1 {name}_poll
    buffer_load_dword v1, v0, s[52:55], 0 offen sc1
    s_waitcnt vmcnt(0)
    v_cmp_ne_u32 vcc, -1, v1
    s_cbranch_vccz {name}_go
    s_ff1_i32_b64 s38, vcc
    s_nop 3
    v_readlane_b32 s39, v1, s38
    s_ff0_i32_b32 s39, s39
    s_lshl_b32 s38, s38, 5
    s_add_u32 s38, s38, s39
    s_andn2_b32 s39, s64, 255
    s_add_u32 s39, s39, 256
    s_or_b32 s38, s38, s39
    s_branch {name}_dec
    """)
    a.label(f"{name}_go")
    a(f"""
    {"buffer_inv sc1" if os.environ.get("LSF", " sc1") == "" else ""}
    s_mov_b32 s38, 0x80000000
    """)
    a.label(f"{name}_dec")
    a(f"""
    v_mov_b32 v1, s38
    s_mov_b64 exec, 1
    ds_write_b32 v{VFA}, v1 offset:24
    """)
    a.label(f"{name}_wdec")
    a(f"""
    s_mov_b64 exec, -1
    ds_read_b32 v{VT}, v{VFA} offset:24
    s_waitcnt lgkmcnt(0)
    v_readfirstlane_b32 s45, v{VT}
    s_cmp_lg_u32 s45, s64
    s_cbranch_scc1 {name}_gotd
    s_sleep 2
    s_branch {name}_wdec
    """)
    a.label(f"{name}_gotd")
    a(f"""
    s_mov_b32 s64, s45
    s_and_b32 s51, s45, 255
    s_mov_b32 s65, 0x10000
    s_mov_b64 s[40:41], 0
    s_bitcmp0_b32 s45, 31
    s_cbranch_scc1 {name}_unit
    """)
    fstamp(3)
    gen2.gen_k2(a, name, fstamp, fstamp_out, MT)
    a.label(f"{name}_end")
    a("s_endpgm")
    return (256, 256)

def gen_k3(a, name):
    kernel_header(a, name)
    a(f"""
    s_cmp_ge_u32 s2, 256
    s_cbranch_scc1 {name}_end
    s_load_dwordx4 s[4:7], s[0:1], 48
    s_load_dwordx2 s[8:9], s[0:1], 72
    v_and_b32 v1, 15, v0
    v_lshrrev_b32 v2, 4, v0
    v_lshlrev_b32 v3, 4, v1
    v_lshl_add_u32 v3, v2, 19, v3
    s_lshl_b32 s3, s2, 8
    s_add_u32 s20, s3, {WS_PART}
    s_waitcnt lgkmcnt(0)
    """)
    srd(a, 12, 8, WS_BYTES)
    srd(a, 16, 6, B * 2)
    srd(a, 24, 4, 2)
    for i in range(8):
        a(f"buffer_load_dwordx4 v[{8+4*i}:{11+4*i}], v3, s[12:15], s20 offen")
        a(f"s_add_u32 s20, s20, 65536")
    a(f"""
    v_lshlrev_b32 v4, 2, v0
    s_add_u32 s21, s3, {WS_PNN}
    s_add_u32 s22, s21, 65536
    v_mov_b32 v5, 0
    buffer_load_dword v40, v4, s[12:15], s21 offen
    buffer_load_dword v41, v4, s[12:15], s22 offen
    buffer_load_ushort v42, v5, s[24:27], 0 offen
    v_lshlrev_b32 v6, 4, v0
    """)
    for i in range(1, 8):
        a(f"s_waitcnt vmcnt({10-i})")
        for r in range(4): a(f"v_add_f32 v{8+r}, v{8+r}, v{8+4*i+r}")
    a(f"""
    ds_write_b128 v6, v[8:11]
    s_waitcnt lgkmcnt(0)
    s_barrier
    v_cmp_gt_u32 vcc, 64, v0
    s_and_saveexec_b64 s[30:31], vcc
    s_cbranch_execz {name}_end
    """)
    for i in range(16):
        a(f"ds_read_b32 v{12+i}, v4 offset:{i*256}")
    a("s_waitcnt lgkmcnt(0)")
    for st in (8, 4, 2, 1):
        for i in range(st): a(f"v_add_f32 v{12+i}, v{12+i}, v{12+i+st}")
    a(f"""
    s_waitcnt vmcnt(0)
    v_add_f32 v40, v40, v41
    v_cvt_pk_bf16_f32 v12, v12, v40
    v_lshlrev_b32 v42, 16, v42
    v_lshlrev_b32 v13, 16, v12
    v_and_b32 v14, 0xffff0000, v12
    v_add_f32 v13, v13, v42
    v_cvt_pk_bf16_f32 v13, v13, v13
    v_lshlrev_b32 v13, 16, v13
    v_add_f32 v13, v13, v14
    v_cvt_pk_bf16_f32 v13, v13, v13
    v_lshlrev_b32 v4, 1, v0
    s_lshl_b32 s3, s2, 7
    buffer_store_short v13, v4, s[16:19], s3 offen
    """)
    a.label(f"{name}_end")
    a("s_endpgm")
    return 48

if __name__ == "__main__":
    out = sys.argv[1]
    which = sys.argv[2] if len(sys.argv) > 2 else "all"
    if len(sys.argv) > 3 and sys.argv[3] == "stamp": STAMP1 = True
    k1 = ("k1_kernel", gen_k1, 256, 512, K1_LDS)
    k3 = ("k3_kernel", gen_k3, 256, 256, 4096)
    s = build({"all": [k1, k3], "k1": [k1]}[which])
    open(out, "w").write(s)
```

```python
import sys, os, re
from gen import Asm, kernel_header, srd, build, WS_BYTES
B, F, D, V, H = 16384, 100, 128, 1000, 512
NRT = int(os.environ.get("NRT", "36"))
NWD = int(os.environ.get("NWD", "4"))
def gen_t(a, name):
    kernel_header(a, name)
    a(f"""
    s_cmp_ge_u32 s2, 256
    s_cbranch_scc1 {name}_end
    s_memtime s[96:97]
    s_load_dwordx8 s[4:11], s[0:1], 0
    s_load_dwordx2 s[12:13], s[0:1], 72
    v_lshrrev_b32 v1, 6, v0
    v_and_b32 v255, 63, v0
    s_bfe_u32 s36, s2, 0x10003
    v_readfirstlane_b32 s3, v1
    s_lshr_b32 s37, s2, 4
    s_lshl_b32 s37, s37, 3
    s_and_b32 s38, s2, 7
    s_or_b32 s37, s37, s38
    v_lshlrev_b32 v254, 4, v255
    v_mul_u32_u24 v6, 57, v255
    v_lshrrev_b32 v6, 9, v6
    v_mul_u32_u24 v5, 9, v6
    v_sub_u32 v5, v255, v5
    v_cmp_gt_u32 s[40:41], 8, v5
    v_lshlrev_b32 v5, 4, v5
    v_lshl_add_u32 v83, v6, 8, v5
    s_and_b32 s56, s3, {NWD-1}
    s_mul_i32 s42, s56, {7*256}
    s_mul_i32 s43, s56, 1008
    s_lshl_b32 s38, s36, 7
    s_add_u32 s42, s42, s38
    s_bitset0_b32 s41, 31
    s_lshr_b32 s72, s2, 3
    s_mul_i32 s72, s72, {NRT}
    s_lshr_b32 s72, s72, 5
    v_and_b32 v5, 15, v255
    v_lshrrev_b32 v6, 4, v255
    v_add_u32 v7, 3, v5
    v_lshrrev_b32 v7, 2, v7
    v_mad_u32_u24 v7, v5, 6, v7
    v_lshlrev_b32 v204, 2, v7
    s_movk_i32 s45, 400
    v_mad_u32_u24 v204, v6, s45, v204
    v_lshlrev_b32 v205, 2, v5
    v_mad_u32_u24 v205, v6, s45, v205
    s_and_b32 s57, s3, 3
    s_lshl_b32 s75, s37, 7
    s_lshl_b32 s73, s57, 4
    s_add_u32 s75, s75, s73
    s_lshl_b32 s73, s36, 6
    s_add_u32 s75, s75, s73
    s_mul_i32 s75, s75, 400
    s_waitcnt lgkmcnt(0)
    s_mov_b32 s86, s96
    """)
    srd(a, 16, 4, B * F * 4)
    srd(a, 20, 6, V * D * 2)
    srd(a, 24, 8, F * F * 2)
    srd(a, 28, 10, F * D * H * 2)
    srd(a, 12, 12, WS_BYTES)
    for i in range(1, 8): a(f"s_mov_b32 s{86+i}, s96")
    MF = os.environ.get("MF", "0") == "1"
    a(f"s_cmp_{'ge' if MF else 'lt'}_u32 s3, 4\ns_cbranch_scc1 {name}_main")
    for role, seq in (((1, sys.argv[2]), (0, sys.argv[3])) if MF else ((1, sys.argv[3]), (0, sys.argv[2]))):
        if role == 0: a.label(f"{name}_main")
        k = [1]; rr = [0]
        def st():
            a(f"s_memtime s[94:95]\ns_waitcnt lgkmcnt(0)\ns_mov_b32 s{86+k[0]}, s94"); k[0] += 1
        for tok in re.findall(r"[A-Z]\d*", seq):
            c = tok[0]; n = int(tok[1:] or 0)
            if c in "TR":
                a("s_mov_b64 exec, s[40:41]")
                for i in range(n):
                    dst = "v83, s[20:23], s74 offen lds" if c == "T" else f"v[{84+4*(rr[0]%36)}:{87+4*(rr[0]%36)}], v83, s[20:23], s74 offen"
                    rr[0] += 1
                    a(f"""
                    s_mul_i32 s73, s72, {NWD*1008}
                    s_mul_i32 s74, s72, {NWD*7*256}
                    s_add_u32 m0, s73, s43
                    s_add_u32 s74, s74, s42
                    s_add_u32 s72, s72, 1
                    buffer_load_dwordx4 {dst}
                    s_cmp_eq_u32 s72, {NRT}
                    s_cselect_b32 s72, 0, s72
                    """)
                a("s_mov_b64 exec, -1")
            elif c == "P":
                a(f"s_lshl_b32 s38, s57, 10\ns_add_u32 m0, s38, 0")
                for i in range(5): a(f"buffer_load_dwordx4 v254, s[24:27], s38 offen lds\ns_add_u32 m0, m0, 4096\ns_add_u32 s38, s38, 4096")
            elif c == "I":
                for t in range(n or 4):
                    a(f"buffer_load_dwordx4 v[{8+8*t}:{8+8*t+3}], v204, s[16:19], s75 offen")
                    a(f"buffer_load_dwordx3 v[{8+8*t+4}:{8+8*t+6}], v204, s[16:19], s75 offen offset:16")
                    a("s_add_u32 s75, s75, 1600")
            elif c == "J":
                for t in range(n):
                    a(f"buffer_load_dwordx4 v[{8+4*t}:{8+4*t+3}], v254, s[16:19], s75 offen\ns_add_u32 s75, s75, 1024")
            elif c == "K":
                a(f"s_load_dword s60, s[6:7], 0\ns_load_dword s61, s[8:9], 0\ns_buffer_load_dword s62, s[16:19], s75\ns_load_dword s63, s[10:11], 0")
            elif c == "L":
                a("s_mov_b32 s76, s75")
                for i in range(n): a(f"s_buffer_load_dword s{60+i%8}, s[16:19], s76\ns_add_u32 s76, s76, {os.environ.get('LST', '128')}")
            elif c == "D":
                for t in range(n):
                    for m in range(7):
                        a(f"buffer_load_dword v{8+8*t+m}, v205, s[16:19], s75 offen offset:{64*m if m < 6 else 336}")
                    a("s_add_u32 s75, s75, 1600")
            elif c == "S": st()
            elif c == "W": a(f"s_waitcnt vmcnt({n})"); st()
            elif c == "N":
                for i in range(n): a("s_nop 15")
        a(f"""
        s_waitcnt vmcnt(0)
        s_barrier
        s_lshl_b32 s94, s2, 3
        s_add_u32 s94, s94, s3
        s_lshl_b32 s94, s94, 11
        s_add_u32 s94, s94, 0x3000000
        v_lshlrev_b32 v1, 1, v254
        """)
        for q in range(8):
            a(f"v_mov_b32 v0, s{86+q}")
            a(f"buffer_store_dword v0, v1, s[12:15], s94 offen offset:{4*q}")
        a("s_endpgm")
    a.label(f"{name}_end")
    a("s_endpgm")
    return (256, 256)
s = build([("mb_kernel", gen_t, 256, 512, 163840)])
s = s.replace("next_free_sgpr 96", "next_free_sgpr 100")
open(sys.argv[1], "w").write(s)
```

```python
import sys, os
sys.path.insert(0, os.path.join(os.path.dirname(os.path.abspath(__file__)), "..", "dev"))
from gen import Asm, kernel_header, srd, build, WS_BYTES

def make(tests, out, nw=8, iters=8, grid=256, setup=None, lds=163840):
    names = list(tests)
    def gen_t(a, name):
        kernel_header(a, name)
        a(f"""
        s_cmp_lt_u32 s2, {grid}
        s_cbranch_scc1 {name}_go
        s_endpgm
        {name}_go:
        s_load_dwordx2 s[4:5], s[0:1], 72
        v_lshrrev_b32 v1, 6, v0
        s_nop 3
        v_readfirstlane_b32 s3, v1
        s_waitcnt lgkmcnt(0)
        """)
        srd(a, 12, 4, WS_BYTES)
        a(f"""
        v_and_b32 v250, 63, v0
        v_lshlrev_b32 v251, 4, v250
        v_mov_b32 v252, v0
        s_lshl_b32 s46, s2, 4
        s_add_u32 s46, s46, s3
        s_lshl_b32 s46, s46, 15
        s_add_u32 s46, s46, 0x3000000
        s_lshl_b32 s47, s3, 16
        """)
        for i in range(60): a(f"buffer_load_dwordx4 v[{4*i}:{4*i+3}], v251, s[12:15], s47 offen offset:{(i%4)*1024}" + ("\ns_add_u32 s47, s47, 4096" if i % 4 == 3 else ""))
        a("s_waitcnt vmcnt(0)")
        if setup: a(setup)
        a("s_waitcnt vmcnt(0) lgkmcnt(0)\ns_barrier")
        a(f"s_cmp_ge_u32 s3, 4\ns_cbranch_scc1 {name}_B")
        for role in (0, 1):
            if role == 1: a.label(f"{name}_B")
            for ti, t in enumerate(names):
                body = tests[t][role]
                pre = tests[t][2] if len(tests[t]) > 2 else None
                if pre: a(pre)
                a("s_mov_b32 s30, 0")
                a(".p2align 3")
                a.label(f"{name}_l{ti}_{role}")
                a(f"s_cmp_lg_u32 s30, 1\ns_cbranch_scc1 {name}_k{ti}_{role}")
                a("s_waitcnt vmcnt(0) lgkmcnt(0)\ns_barrier\ns_memtime s[22:23]\ns_waitcnt lgkmcnt(0)")
                a.label(f"{name}_k{ti}_{role}")
                if body:
                    for l in body: a(l)
                a(f"s_add_u32 s30, s30, 1\ns_cmp_lt_u32 s30, {iters+1}\ns_cbranch_scc1 {name}_l{ti}_{role}")
                a("s_waitcnt vmcnt(0) lgkmcnt(0)\ns_memtime s[24:25]\ns_waitcnt lgkmcnt(0)\ns_barrier\ns_sub_u32 s22, s24, s22\ns_nop 7\ns_nop 7\nv_mov_b32 v249, s22")
                a(f"buffer_store_dword v249, v251, s[12:15], s46 offen\ns_add_u32 s46, s46, 1024\ns_setprio 0")
            a("s_waitcnt vmcnt(0)\ns_endpgm")
        return (256, 256)
    open(out, "w").write(build([("mb_kernel", gen_t, grid, 64 * nw, lds)]))
    open(out + ".names", "w").write(f"{iters}\n" + "\n".join(names))
```

```python
from mb import make
import sys, re
def body(f):
    L = open(f).read().split("\n")
    i = L.index("k1_kernel_loop:")
    j = next(k for k in range(i, len(L)) if "s_cmp_lt_u32 m0, s58" in L[k])
    return [l.strip() for l in L[i+1:j] if l.strip()]
T = {}
for f in sys.argv[2:]:
    b = body(f)
    kg = re.search(r"s57, v(\d+) op_sel", [l for l in b if "v_mad_u32_u16" in l][0]).group(1)
    vadd = [l for l in b if l.startswith("v_add_u32")][0]
    vsl = re.search(r"v_add_u32 v(\d+)", vadd).group(1)
    sm = [l for l in b if "smfmac" in l]
    pre = f"v_and_b32 v{kg}, 48, v250\nv_mov_b32 v{vsl}, v240\ns_movk_i32 s57, 144\n"
    if sm: pre += f"v_mov_b32 {sm[0].split(',')[-1].strip()}, 0xdddddddd\n"
    idq = re.search(r"ds_read_b128 v\[(\d+):\d+\], v" + vsl, "\n".join(b)).group(1)
    pre += f"ds_read_b128 v[{idq}:{int(idq)+3}], v{vsl}\ns_waitcnt lgkmcnt(0)\n"
    b = [l if l != vadd else f"v_add_u32 v{vsl}, 0, v{vsl}" for l in b]
    nm = f[:-2]
    T[f"{nm} full"] = (b * 2, None, pre)
    T[f"{nm} nods"] = ([l for l in b if not l.startswith("ds_") and not l.startswith("s_waitcnt")] * 2, None, pre)
    T[f"{nm} MS"] = ([l for l in b if "mfma" in l] * 2, None, pre)
    T[f"{nm} MSds"] = ([l for l in b if "mfma" in l or l.startswith("ds_") or l.startswith("s_waitcnt") or l.startswith("v_mad")] * 2, None, pre)
    T[f"{nm} nowait"] = ([l for l in b if not l.startswith("s_waitcnt")] * 2, None, pre)
T = {k + "/2": v for k, v in T.items()}
setup = """
v_and_b32 v240, 15, v250
v_mul_u32_u24 v240, 144, v240
s_mul_i32 s40, s3, 2304
s_add_u32 s40, s40, 128
v_add_u32 v240, s40, v240
s_lshl_b32 s41, s2, 2
v_add_u32 v241, s41, v250
v_mul_lo_u32 v241, v241, v241
v_xor_b32 v0, v0, v241
v_lshrrev_b32 v241, 3, v241
v_xor_b32 v1, v1, v241
v_lshrrev_b32 v241, 3, v241
v_xor_b32 v2, v2, v241
v_xor_b32 v3, v3, v241
v_and_b32 v242, 0x01ff01ff, v0
v_and_b32 v243, 0x01ff01ff, v1
v_and_b32 v244, 0x01ff01ff, v2
v_and_b32 v245, 0x01ff01ff, v3
ds_write_b128 v240, v[242:245]
"""
assert len(T) <= 32
make(T, sys.argv[1], setup=setup)
```

```python
import sys, os
from gen import Asm, kernel_header, srd, build, WS_BYTES
def make(tests, out, nw=8, grid=256, setup=None, lds=163840):
    names = list(tests)
    def gen_t(a, name):
        kernel_header(a, name)
        a(f"""
        s_cmp_lt_u32 s2, {grid}
        s_cbranch_scc1 {name}_go
        s_endpgm
        {name}_go:
        s_load_dwordx2 s[4:5], s[0:1], 72
        v_lshrrev_b32 v1, 6, v0
        s_nop 3
        v_readfirstlane_b32 s3, v1
        s_waitcnt lgkmcnt(0)
        """)
        srd(a, 12, 4, WS_BYTES)
        a(f"""
        v_and_b32 v250, 63, v0
        v_lshlrev_b32 v251, 4, v250
        v_mov_b32 v252, v0
        s_lshl_b32 s46, s2, 4
        s_add_u32 s46, s46, s3
        s_lshl_b32 s46, s46, 15
        s_add_u32 s46, s46, 0x3000000
        s_lshl_b32 s47, s3, 16
        """)
        for i in range(60): a(f"buffer_load_dwordx4 v[{4*i}:{4*i+3}], v251, s[12:15], s47 offen offset:{(i%4)*1024}" + ("\ns_add_u32 s47, s47, 4096" if i % 4 == 3 else ""))
        a("s_waitcnt vmcnt(0)")
        if setup: a(setup)
        a("s_waitcnt vmcnt(0) lgkmcnt(0)\ns_barrier")
        a(f"s_cmp_ge_u32 s3, 4\ns_cbranch_scc1 {name}_B")
        for role in (0, 1):
            if role == 1: a.label(f"{name}_B")
            for ti, t in enumerate(names):
                body = tests[t][role]; iters = tests[t][2]
                pre = tests[t][3] if len(tests[t]) > 3 else None
                if pre: a(pre)
                a("s_mov_b32 s30, 0")
                a("s_waitcnt vmcnt(0) lgkmcnt(0)\ns_barrier\ns_memtime s[22:23]\ns_memrealtime s[26:27]\ns_waitcnt lgkmcnt(0)")
                if body:
                    a.label(f"{name}_l{ti}_{role}")
                    for l in body: a(l)
                    a(f"s_add_u32 s30, s30, 1\ns_cmp_lt_u32 s30, {iters}\ns_cbranch_scc1 {name}_l{ti}_{role}")
                a("s_waitcnt vmcnt(0) lgkmcnt(0)\ns_barrier\ns_memtime s[24:25]\ns_memrealtime s[28:29]\ns_waitcnt lgkmcnt(0)\ns_sub_u32 s22, s24, s22\ns_sub_u32 s26, s28, s26\ns_nop 7\ns_nop 7\nv_mov_b32 v248, s22\nv_mov_b32 v249, s26")
                a(f"buffer_store_dwordx2 v[248:249], v251, s[12:15], s46 offen\ns_add_u32 s46, s46, 1024\ns_setprio 0")
            a("s_waitcnt vmcnt(0)\ns_endpgm")
        return (256, 256)
    open(out, "w").write(build([("mb_kernel", gen_t, grid, 64 * nw, lds)]))
    open(out + ".names", "w").write("\n".join(f"{n}/{tests[n][2]}" for n in names))
setup = """
v_lshlrev_b32 v240, 4, v252
""" + "".join(f"ds_write_b128 v240, v[{4*i}:{4*i+3}] offset:{8192*(i%8)}\n" + ("v_add_u32 v240, 0x10000, v240\n" if i % 8 == 7 else "") for i in range(16)) + """
v_and_b32 v240, 30, v250
v_lshlrev_b32 v240, 3, v240
v_and_b32 v243, 1, v250
v_lshl_add_u32 v240, v243, 8, v240
v_and_b32 v243, 0x1f8, v0
v_lshl_add_u32 v240, v243, 8, v240
v_mov_b32 v241, 0x4444
v_mov_b32 v244, 0
v_mov_b32 v245, 0
v_mov_b32 v246, 0
v_mov_b32 v247, 0
"""
```

```python
from mbf import *
N = 64
def v4(r): return f"v[{r}:{r+3}]"
def M(d, a_, b_, acc): return f"v_mfma_f32_16x16x32_bf16 {v4(d)}, {v4(a_)}, {v4(b_)}, " + (v4(d) if acc else "0")
T = {}
nop = ["s_nop 15"] * 32
def add(n, a_, b_, it, pre=None):
    T[f"idle{len(T)}"] = (nop, nop, 30)
    T[n] = (a_, b_, it, pre)
add("M chg2", [M(200+4*((k//2)%4), 4+4*(k%8), 128+4*(k%12), k%2) for k in range(N)], None, 50)
add("M chg4", [M(200+4*((k//4)%4), 4+4*(k%8), 128+4*(k%12), k%4) for k in range(N)], None, 50)
add("M sameA8", [M(200+4*(k%8), 4+4*((k//8)%4), 64+4*(k%32), k//8%4) for k in range(N)], None, 50)
add("M sameB8", [M(200+4*(k%8), 64+4*(k%32), 4+4*((k//8)%4), k//8%4) for k in range(N)], None, 50)
add("M sameAB", [M(200+4*(k%8), 64, 4, 0) for k in range(N)], None, 50)
add("M zeroA", [M(200+4*((k//2)%4), 244, 128+4*(k%12), k%2) for k in range(N)], None, 50)
add("M zeroB", [M(200+4*((k//2)%4), 128+4*(k%12), 244, k%2) for k in range(N)], None, 50)
def B32(d, a_, b_, acc): return f"v_mfma_f32_32x32x16_bf16 v[{d}:{d+15}], {v4(a_)}, {v4(b_)}, " + (f"v[{d}:{d+15}]" if acc else "0")
add("M32 chg8", [B32(200+16*((k//8)%2), 4+4*(k%8), 128+4*(k%12), k%8) for k in range(N//2)], None, 50)
SELPRE = """
v_lshrrev_b32 v232, 4, v250
v_lshrrev_b32 v233, 3, v250
v_xor_b32 v233, v233, v232
v_and_b32 v233, 1, v233
v_bfe_u32 v234, v250, 2, 1
v_lshl_or_b32 v233, v233, 1, v234
v_mov_b32 v235, 0x3f80
v_cmp_eq_u32 vcc, 0, v233
s_nop 1
v_cndmask_b32 v236, 0, v235, vcc
v_cndmask_b32 v237, 0, v235, vcc
v_cmp_eq_u32 vcc, 1, v233
s_nop 1
v_cndmask_b32 v238, 0, v235, vcc
v_cndmask_b32 v239, 0, v235, vcc
v_and_b32 v234, 3, v250
v_mul_u32_u24 v242, 0x5555, v234
"""
def S(d, a_, b_, ix): return f"v_smfmac_f32_16x16x64_bf16 {v4(d)}, {v4(a_)}, v[{b_}:{b_+7}], v{ix}"
add("S sel", [S(136+4*(k%16), 236, 8*(k%16), 242) for k in range(N)], None, 50, SELPRE)
add("S rndA", [S(136+4*(k%16), 200+4*(k%8), 8*(k%16), 241) for k in range(N)], None, 50)
add("V fmac", [f"v_fmac_f32 v{232+k%4}, v{20+k%32}, v{60+k%32}" for k in range(4*N)], None, 50)
add("V sdwa", [f"v_lshlrev_b32_sdwa v{176+2*(k%12)}, 3, v{20+(k//2)%32} dst_sel:DWORD dst_unused:UNUSED_PAD src0_sel:DWORD src1_sel:WORD_{k&1}" for k in range(4*N)], None, 50)
add("V cvt", [f"v_cvt_pk_bf16_f32 v{176+k%12}, v{20+k%32}, v{60+k%32}" for k in range(4*N)], None, 50)
add("V pkfma", [f"v_pk_fma_f32 v[{232+2*(k%2)}:{233+2*(k%2)}], v[{20+2*(k%16)}:{21+2*(k%16)}], v[{60+2*(k%16)}:{61+2*(k%16)}], v[{232+2*(k%2)}:{233+2*(k%2)}]" for k in range(4*N)], None, 50)
add("SALU", [f"s_add_u32 s{50+k%8}, s{50+(k+1)%8}, s46" for k in range(4*N)], None, 50)
make(T, sys.argv[1], setup=setup)
```
